```python
import torch

def _softmax(x, axis=-1):
    return torch.softmax(x, dim=axis)
def _gelu(x):
    return torch.nn.functional.gelu(x, approximate="tanh")
def _silu(x):
    return torch.nn.functional.silu(x)
def _sigmoid(x):
    return torch.sigmoid(x)
def _layernorm(x, axis=-1, eps=1e-5):
    m = x.mean(dim=axis, keepdim=True)
    v = x.var(dim=axis, keepdim=True, unbiased=False)
    return (x - m) / torch.sqrt(v + eps)
def _scatter_add(tgt, idx, src, axis=0):
    return tgt.clone().index_add_(axis, idx, src)
def _segment_sum(src, seg, n):
    out = torch.zeros((n,) + src.shape[1:], dtype=src.dtype)
    return out.index_add_(0, seg, src)
def _pad(x, pw):
    flat = tuple(v for pair in reversed(pw) for v in pair)
    return torch.nn.functional.pad(x, flat)

kernel_name = 'concat_heads__grouped_kv_mqa__compressed_kv_cla__prompt'

def setup_inputs():

    _w = (lambda a: (lambda t: t.to(torch.bfloat16) if t.is_floating_point() else t)(torch.as_tensor(a)))
    def _A_setup():
        B, S, D, H = 1, 2048, 512, 32
        Dh = D // H
        return {
            "x": _w((lambda *s: torch.randn(*s, dtype=torch.bfloat16) * 0.05)(B, S, D)),
            "wq": _w((lambda *s: torch.randn(*s, dtype=torch.bfloat16) * 0.8)(D, H * Dh)),
            "wk": _w((lambda *s: torch.randn(*s, dtype=torch.bfloat16) * 0.8)(D, Dh)),
            "wv": _w((lambda *s: torch.randn(*s, dtype=torch.bfloat16) * 0.05)(D, Dh)),
            "wo": _w((lambda *s: torch.randn(*s, dtype=torch.bfloat16) * 0.05)(H * Dh, D)),
        }
    _A_in = _A_setup()

    def _B_setup():
        B, H, Sq, Sk, D, M = 1, 32, 2048, 2048, 128, 512
        Dc = 4 * D
        return {
            "x": _w((lambda *s: torch.randn(*s, dtype=torch.bfloat16) * 3.2)(B, Sq, M)),
            "c_kv": _w((lambda *s: torch.randn(*s, dtype=torch.bfloat16) * 0.1)(B, Sk, Dc)),
            "w_q": _w((lambda *s: torch.randn(*s, dtype=torch.bfloat16) * 6.4)(M, H, D) * (M ** -0.5)),
            "w_uk": _w((lambda *s: torch.randn(*s, dtype=torch.bfloat16) * 6.4)(Dc, H, D) * (Dc ** -0.5)),
            "w_uv": _w((lambda *s: torch.randn(*s, dtype=torch.bfloat16) * 0.1)(Dc, H, D) * (Dc ** -0.5)),
            "w_o": _w((lambda *s: torch.randn(*s, dtype=torch.bfloat16) * 0.1)(H, D, M) * ((H * D) ** -0.5)),
        }
    _B_in = _B_setup()

    return {
        "A_x": _A_in["x"],
        "A_wq": _A_in["wq"],
        "A_wk": _A_in["wk"],
        "A_wv": _A_in["wv"],
        "A_wo": _A_in["wo"],
        "B_x": _B_in["x"],
        "B_c_kv": _B_in["c_kv"],
        "B_w_q": _B_in["w_q"],
        "B_w_uk": _B_in["w_uk"],
        "B_w_uv": _B_in["w_uv"],
        "B_w_o": _B_in["w_o"],
    }

def reference(A_x, A_wq, A_wk, A_wv, A_wo, B_x, B_c_kv, B_w_q, B_w_uk, B_w_uv, B_w_o):
    def _A_ref(x, wq, wk, wv, wo):
        B, S, D = x.shape
        H = 32
        Dh = D // H
        q = (lambda x, *d: x.permute(*d))((x @ wq).reshape(B, S, H, Dh), 0, 2, 1, 3)
        k = x @ wk
        v = x @ wv
        scores = torch.einsum("bhqd,bkd->bhqk", q, k) * (Dh ** -0.5)
        p = _softmax(scores, axis=-1)
        o = torch.einsum("bhqk,bkd->bhqd", p, v)
        return (lambda x, *d: x.permute(*d))(o, 0, 2, 1, 3).reshape(B, S, H * Dh) @ wo

    def _B_ref(x, c_kv, w_q, w_uk, w_uv, w_o):
        B, Sq, M = x.shape[0], x.shape[1], x.shape[2]
        Sk = c_kv.shape[1]
        H, D = w_q.shape[1], w_q.shape[2]
        q = torch.einsum("bqm,mhd->bhqd", x, w_q)
        k = torch.einsum("bkc,chd->bhkd", c_kv, w_uk)
        v = torch.einsum("bkc,chd->bhkd", c_kv, w_uv)
        scores = torch.einsum("bhqd,bhkd->bhqk", q, k) * (D ** -0.5)
        off = Sk - Sq
        qi = torch.arange(Sq)[:, None]
        kj = torch.arange(Sk)[None, :]
        cmask = kj <= (qi + off)
        scores = torch.where(cmask[None, None], scores, -1e9)
        p = _softmax(scores, axis=-1)
        ctx = torch.einsum("bhqk,bhkd->bhqd", p, v)
        return torch.einsum("bhqd,hdm->bqm", ctx, w_o)

    a = _A_ref(A_x, A_wq, A_wk, A_wv, A_wo)
    b = _B_ref(B_x, B_c_kv, B_w_q, B_w_uk, B_w_uv, B_w_o)
    return torch.concatenate([a, b], axis=-1)
```

```python
class A:
    def __init__(self):
        self.L = []
        A.g = getattr(A,'g',0)+1000; self.uid = A.g
    def __call__(self, s):
        self.L.append("    " + s)
    def label(self, s):
        self.L.append(s + ":")
    def c(self, s):
        self.L.append("    ; " + s)
    def new(self, p="L"):
        self.uid += 1
        return f"{p}_{self.uid}"
    def text(self):
        return "\n".join(self.L) + "\n"

def vr(a, n):
    return f"v[{a}:{a+n-1}]"
def sr(a, n):
    return f"s[{a}:{a+n-1}]"
```

```python
from asmlib import *
import math
QB_OFF=0; KB_OFF=16<<20; VB_OFF=32<<20; QA_OFF=48<<20; KA_OFF=50<<20; VA_OFF=51<<20; OA_OFF=52<<20; CTX_OFF=56<<20

def f2u(x):
    import struct
    return struct.unpack("<I", struct.pack("<f", x))[0]

def softmax_tile(a, S, n, V_M, V_L, V_T, OACC, no, P, sc_s, dosum=True):
    t = V_T
    a(f"v_max3_f32 v{t}, v{S}, v{S+1}, v{S+2}")
    i = 3
    while i + 1 < n:
        a(f"v_max3_f32 v{t}, v{t}, v{S+i}, v{S+i+1}"); i += 2
    if i < n:
        a(f"v_max_f32 v{t}, v{t}, v{S+i}")
    a(f"v_mov_b32 v{t+1}, v{t}")
    a("s_nop 1")
    a(f"v_permlane32_swap_b32 v{t}, v{t+1}")
    a(f"v_max_f32 v{t}, v{t}, v{t+1}")
    a(f"v_max_f32 v{t}, v{t}, v{V_M}")
    a(f"v_sub_f32 v{t+1}, v{V_M}, v{t}")
    a(f"v_mul_f32 v{t+1}, s{sc_s}, v{t+1}")
    a(f"v_exp_f32 v{t+1}, v{t+1}")
    a(f"v_mov_b32 v{V_M}, v{t}")
    a(f"v_mul_f32 v{t}, s{sc_s}, v{t}")
    for i in range(n):
        a(f"v_fma_f32 v{S+i}, v{S+i}, s{sc_s}, -v{t}")
    for i in range(n):
        a(f"v_exp_f32 v{S+i}, v{S+i}")
    if dosum: a(f"v_mul_f32 v{V_L}, v{V_L}, v{t+1}")
    for i in range(no):
        a(f"v_mul_f32 v{OACC+i}, v{OACC+i}, v{t+1}")
    for i in range(n if dosum else 0):
        a(f"v_add_f32 v{V_L}, v{V_L}, v{S+i}")
    for i in range(n // 2):
        a(f"v_cvt_pk_bf16_f32 v{P+i}, v{S+2*i}, v{S+2*i+1}")

def gen_attn_b(name):
    a = A()
    KRS = 272; VRS = 320
    KBY = 64 * KRS; VBY = 64 * VRS; BUF = KBY + VBY
    V_KG, V_VG, V_KW, V_VW, V_KR, V_VR, V_Q, V_M, V_L, V_T = 1, 2, 3, 4, 5, 6, 7, 8, 9, 10
    QF = 16; ST = 48; S = 80; P = 112; FB = 128; O = 160; NV = 224
    a.label(name)
    done = a.new("done")
    a("s_load_dwordx2 s[4:5], s[0:1], 104")
    a("s_cmp_ge_u32 s2, 512")
    a(f"s_cbranch_scc1 {done}")
    a("s_and_b32 s20, s2, 31")
    a("s_lshr_b32 s21, s2, 5")
    a("s_sub_u32 s21, 15, s21")
    a("s_waitcnt lgkmcnt(0)")
    for d, off in ((8, QB_OFF), (12, KB_OFF), (16, VB_OFF), (24, CTX_OFF)):
        a(f"s_add_u32 s{d}, s4, {off}"); a(f"s_addc_u32 s{d+1}, s5, 0")
        a(f"s_mov_b32 s{d+2}, {16<<20}"); a(f"s_mov_b32 s{d+3}, 0x00020000")
    a("s_lshl_b32 s22, s20, 8")
    a("v_lshrrev_b32 v11, 6, v0"); a("s_nop 1"); a("v_readfirstlane_b32 s23, v11")
    a("v_and_b32 v11, 15, v0"); a("v_lshrrev_b32 v12, 4, v0")
    a(f"v_lshlrev_b32 v{V_KG}, 13, v12"); a(f"v_lshl_add_u32 v{V_KG}, v11, 4, v{V_KG}")
    a(f"v_add_u32 v{V_KG}, s22, v{V_KG}")
    a(f"s_movk_i32 s28, {KRS}"); a(f"v_mul_lo_u32 v{V_KW}, v12, s28"); a(f"v_lshl_add_u32 v{V_KW}, v11, 4, v{V_KW}")
    a(f"s_movk_i32 s28, {VRS}"); a(f"v_mul_lo_u32 v{V_VW}, v12, s28"); a(f"v_lshl_add_u32 v{V_VW}, v11, 4, v{V_VW}")
    a(f"v_add_u32 v{V_VW}, {KBY}, v{V_VW}")
    a("v_and_b32 v11, 31, v0"); a("v_bfe_u32 v12, v0, 5, 1")
    a(f"s_movk_i32 s28, {KRS}"); a(f"v_mul_lo_u32 v{V_KR}, v11, s28"); a(f"v_lshl_add_u32 v{V_KR}, v12, 4, v{V_KR}")
    a("v_bfe_u32 v13, v0, 2, 2"); a("v_lshl_add_u32 v13, v12, 2, v13")
    a(f"s_movk_i32 s28, {VRS}"); a(f"v_mul_lo_u32 v{V_VR}, v13, s28")
    a("v_bfe_u32 v13, v0, 4, 1"); a(f"v_lshl_add_u32 v{V_VR}, v13, 5, v{V_VR}")
    a("v_and_b32 v13, 3, v0"); a(f"v_lshl_add_u32 v{V_VR}, v13, 3, v{V_VR}")
    a(f"v_add_u32 v{V_VR}, {KBY}, v{V_VR}")
    a("s_lshl_b32 s29, s21, 7"); a("s_lshl_b32 s30, s23, 5"); a("s_add_u32 s29, s29, s30")
    a(f"v_add_u32 v{V_Q}, s29, v11")
    a(f"v_lshlrev_b32 v13, 13, v{V_Q}"); a("v_lshl_add_u32 v13, v12, 4, v13"); a("v_add_u32 v13, s22, v13")
    for ks in range(8):
        a(f"buffer_load_dwordx4 {vr(QF+4*ks,4)}, v13, s[8:11], 0 offen offset:{ks*32}")
    a(f"v_lshlrev_b32 v14, 2, v12"); a(f"v_sub_u32 v14, v{V_Q}, v14")
    a(f"v_mov_b32 v{V_M}, 0xf149f2ca"); a(f"v_mov_b32 v{V_L}, 0")
    for i in range(64): a(f"v_mov_b32 v{O+i}, 0")
    a(f"s_mov_b32 s31, {f2u(128**-0.5*math.log2(math.e))}")
    a("s_lshl_b32 s32, s21, 1"); a("s_add_u32 s32, s32, 2")
    a("s_mov_b32 s33, 0")
    a("s_mov_b32 s35, 0")
    a(f"s_mov_b32 s38, {BUF}")
    def gload():
        for i in range(4):
            a(f"s_add_u32 s36, s35, {i<<17}")
            a(f"buffer_load_dwordx4 {vr(ST+4*i,4)}, v{V_KG}, s[12:15], s36 offen")
            a(f"buffer_load_dwordx4 {vr(ST+16+4*i,4)}, v{V_KG}, s[16:19], s36 offen")
        a(f"s_add_u32 s35, s35, {64<<13}")
    def lwrite():
        a("s_waitcnt vmcnt(0)")
        for i in range(4):
            a(f"ds_write_b128 v{V_KW}, {vr(ST+4*i,4)} offset:{i*16*KRS}")
            a(f"ds_write_b128 v{V_VW}, {vr(ST+16+4*i,4)} offset:{i*16*VRS}")
    gload(); lwrite()
    a(f"v_add_u32 v{V_KW}, s38, v{V_KW}"); a(f"v_add_u32 v{V_VW}, s38, v{V_VW}")
    a("s_waitcnt lgkmcnt(0)"); a("s_barrier")
    loop = a.new("loop"); nold = a.new("nold"); nowr = a.new("nowr"); nomask = a.new("nomask")
    a.label(loop)
    a("s_add_u32 s34, s33, 1"); a("s_cmp_ge_u32 s34, s32"); a(f"s_cbranch_scc1 {nold}")
    gload()
    a.label(nold)
    for t in range(2):
        for ks in range(8):
            a(f"ds_read_b128 {vr(FB+4*ks,4)}, v{V_KR} offset:{t*32*KRS+ks*32}")
        for ks in range(8):
            a(f"s_waitcnt lgkmcnt({7-ks})")
            c = "0" if ks == 0 else vr(S+16*t,16)
            a(f"v_mfma_f32_32x32x16_bf16 {vr(S+16*t,16)}, {vr(FB+4*ks,4)}, {vr(QF+4*ks,4)}, {c}")
    a("s_nop 15")
    a("s_add_u32 s34, s33, 2"); a("s_cmp_lt_u32 s34, s32"); a(f"s_cbranch_scc1 {nomask}")
    a("s_lshl_b32 s34, s33, 6")
    for t in range(2):
        for r in range(16):
            a(f"s_add_u32 s36, s34, {t*32+8*(r//4)+r%4}")
            a(f"v_cmp_lt_i32 vcc, v14, s36")
            a("s_nop 1")
            a(f"v_cndmask_b32 v{S+16*t+r}, v{S+16*t+r}, v{V_L+6}, vcc")
    a.label(nomask)
    softmax_tile(a, S, 32, V_M, V_L, V_T, O, 64, P, 31)
    def vfr(j, st):
        for dt in range(4):
            for h in range(2):
                a(f"ds_read_b64_tr_b16 {vr(FB+16*st+4*dt+2*h,2)}, v{V_VR} offset:{(16*j+8*h)*VRS+dt*64}")
    vfr(0, 0)
    for j in range(4):
        if j < 3:
            vfr(j + 1, (j + 1) & 1); a("s_waitcnt lgkmcnt(8)")
        else:
            a("s_waitcnt lgkmcnt(0)")
        for dt in range(4):
            a(f"v_mfma_f32_32x32x16_bf16 {vr(O+16*dt,16)}, {vr(FB+16*(j&1)+4*dt,4)}, {vr(P+4*j,4)}, {vr(O+16*dt,16)}")
    a("s_add_u32 s34, s33, 1"); a("s_cmp_ge_u32 s34, s32"); a(f"s_cbranch_scc1 {nowr}")
    lwrite()
    a.label(nowr)
    a(f"v_add_u32 v{V_KR}, s38, v{V_KR}"); a(f"v_add_u32 v{V_VR}, s38, v{V_VR}")
    a("s_sub_u32 s38, 0, s38")
    a(f"v_add_u32 v{V_KW}, s38, v{V_KW}"); a(f"v_add_u32 v{V_VW}, s38, v{V_VW}")
    a("s_waitcnt lgkmcnt(0)"); a("s_barrier")
    a("s_add_u32 s33, s33, 1"); a("s_cmp_lt_u32 s33, s32"); a(f"s_cbranch_scc1 {loop}")
    a("s_nop 15")
    a(f"v_mov_b32 v{V_T}, v{V_L}"); a("s_nop 1"); a(f"v_permlane32_swap_b32 v{V_T}, v{V_L}")
    a(f"v_add_f32 v{V_L}, v{V_L}, v{V_T}"); a(f"v_rcp_f32 v{V_L}, v{V_L}")
    a(f"v_lshlrev_b32 v13, 13, v{V_Q}"); a("v_lshl_add_u32 v13, v12, 3, v13"); a("v_add_u32 v13, s22, v13")
    for i in range(64): a(f"v_mul_f32 v{O+i}, v{O+i}, v{V_L}")
    for dt in range(4):
        for g in range(4):
            r = O + 16 * dt + 4 * g; tmp = FB + 2 * (dt * 4 + g)
            a(f"v_cvt_pk_bf16_f32 v{tmp}, v{r}, v{r+1}"); a(f"v_cvt_pk_bf16_f32 v{tmp+1}, v{r+2}, v{r+3}")
            a(f"buffer_store_dwordx2 {vr(tmp,2)}, v13, s[24:27], 0 offen offset:{(dt*32+8*g)*2}")
    a.label(done); a("s_endpgm")
    txt = a.text().replace(f"v_mov_b32 v{V_L}, 0\n", f"v_mov_b32 v{V_L}, 0\n    v_mov_b32 v{V_L+6}, 0xf149f2ca\n", 1)
    return txt, dict(name=name, vgpr=NV, sgpr=48, lds=2*BUF, threads=256, grid=512)


def gen_attn_a(name):
    a = A()
    KBY = 1024 * 32; VBY = 1024 * 64
    V_KR, V_VR, V_Q, V_M, V_L, V_T = 1, 2, 3, 4, 5, 6
    QF = 16; S = 32; P = 64; FB = 80; O = 112; NV = 128
    a.label(name)
    done = a.new("done")
    a("s_load_dwordx2 s[4:5], s[0:1], 104")
    a("s_cmp_ge_u32 s2, 256"); a(f"s_cbranch_scc1 {done}")
    a("s_waitcnt lgkmcnt(0)")
    for d, off, n in ((8, QA_OFF, 2<<20), (12, KA_OFF, 65536), (16, VA_OFF, 65536), (24, OA_OFF, 2<<20)):
        a(f"s_add_u32 s{d}, s4, {off}"); a(f"s_addc_u32 s{d+1}, s5, 0")
        a(f"s_mov_b32 s{d+2}, {n}"); a(f"s_mov_b32 s{d+3}, 0x00020000")
    a("v_lshrrev_b32 v11, 6, v0"); a("s_nop 1"); a("v_readfirstlane_b32 s23, v11")
    a("s_lshl_b32 s20, s2, 3"); a("s_add_u32 s20, s20, s23")
    a("s_lshr_b32 s21, s20, 6"); a("s_and_b32 s22, s20, 63")
    a("v_and_b32 v11, 31, v0"); a("v_bfe_u32 v12, v0, 5, 1")
    a("s_lshl_b32 s22, s22, 5"); a(f"v_add_u32 v{V_Q}, s22, v11")
    a("s_lshl_b32 s21, s21, 5")
    a(f"v_lshlrev_b32 v13, 10, v{V_Q}"); a("v_lshl_add_u32 v13, v12, 4, v13"); a("v_add_u32 v13, s21, v13")
    a(f"buffer_load_dwordx4 {vr(QF,4)}, v13, s[8:11], 0 offen")
    a(f"v_lshlrev_b32 v{V_KR}, 5, v11"); a(f"v_lshl_add_u32 v{V_KR}, v12, 4, v{V_KR}")
    a("v_bfe_u32 v13, v0, 2, 2"); a("v_lshl_add_u32 v13, v12, 2, v13")
    a(f"v_lshlrev_b32 v{V_VR}, 6, v13")
    a("v_bfe_u32 v13, v0, 4, 1"); a(f"v_lshl_add_u32 v{V_VR}, v13, 5, v{V_VR}")
    a("v_and_b32 v13, 3, v0"); a(f"v_lshl_add_u32 v{V_VR}, v13, 3, v{V_VR}")
    a(f"v_add_u32 v{V_VR}, {KBY}, v{V_VR}")
    a(f"v_mov_b32 v{V_M}, 0xf149f2ca")
    for i in range(16): a(f"v_mov_b32 v{O+i}, 0")
    a(f"s_mov_b32 s31, {f2u(0.25*math.log2(math.e))}")
    a("v_mov_b32 v20, 0x3f80"); a("v_mov_b32 v21, 0"); a("v_mov_b32 v22, 0"); a("v_mov_b32 v23, 0")
    for ph in range(2):
        a("s_barrier")
        a("v_lshlrev_b32 v13, 4, v0")
        for i in range(4):
            a(f"buffer_load_dwordx4 {vr(FB+4*i,4)}, v13, s[12:15], 0 offen offset:0" .replace("0 offen", f"s40 offen") if False else f"s_mov_b32 s40, {ph*32768+i*8192}")
            a(f"buffer_load_dwordx4 {vr(FB+4*i,4)}, v13, s[12:15], s40 offen")
            a(f"buffer_load_dwordx4 {vr(FB+16+4*i,4)}, v13, s[16:19], s40 offen")
        a("v_lshrrev_b32 v14, 1, v0"); a("v_lshlrev_b32 v14, 6, v14"); a("v_and_b32 v15, 1, v0")
        a("v_lshl_add_u32 v14, v15, 4, v14"); a(f"v_add_u32 v14, {KBY}, v14")
        a("s_waitcnt vmcnt(0)")
        for i in range(4):
            a(f"ds_write_b128 v13, {vr(FB+4*i,4)} offset:{i*8192}")
            a(f"ds_write_b128 v14, {vr(FB+16+4*i,4)} offset:{i*16384}")
        a("v_cmp_eq_u32 vcc, 0, v15"); a("s_nop 1"); a("v_cndmask_b32 v20, 0, v24, vcc".replace("v24", "v9"))
        for i in range(4):
            a(f"ds_write_b128 v14, v[20:23] offset:{i*16384+32}")
        a("s_waitcnt lgkmcnt(0)"); a("s_barrier")
        loop = a.new("loop")
        a("s_mov_b32 s33, 0")
        a.label(loop)
        a(f"v_add_u32 v13, s33, v{V_KR}")
        a("s_lshl_b32 s34, s33, 1"); a(f"v_add_u32 v14, s34, v{V_VR}")
        for t in range(2):
            a(f"ds_read_b128 {vr(FB+4*t,4)}, v13 offset:{t*1024}")
        for j in range(4):
            for h in range(2):
                a(f"ds_read_b64_tr_b16 {vr(FB+8+4*j+2*h,2)}, v14 offset:{(16*j+8*h)*64}")
        for t in range(2):
            a(f"s_waitcnt lgkmcnt({9-t})")
            a(f"v_mfma_f32_32x32x16_bf16 {vr(S+16*t,16)}, {vr(FB+4*t,4)}, {vr(QF,4)}, 0")
        a("s_nop 15")
        softmax_tile(a, S, 32, V_M, V_L, V_T, O, 16, P, 31, dosum=False)
        a("s_waitcnt lgkmcnt(0)")
        for j in range(4):
            a(f"v_mfma_f32_32x32x16_bf16 {vr(O,16)}, {vr(FB+8+4*j,4)}, {vr(P+4*j,4)}, {vr(O,16)}")
        a("s_add_u32 s33, s33, 2048"); a(f"s_cmp_lt_u32 s33, {KBY}"); a(f"s_cbranch_scc1 {loop}")
    a("s_nop 15")
    a(f"v_mov_b32 v{V_T}, v{O+8}"); a(f"v_mov_b32 v{V_L}, v{O+8}"); a("s_nop 1")
    a(f"v_permlane32_swap_b32 v{V_T}, v{V_L}")
    a(f"v_rcp_f32 v{V_T}, v{V_T}")
    a(f"v_lshlrev_b32 v13, 10, v{V_Q}"); a("v_lshl_add_u32 v13, v12, 3, v13"); a("v_add_u32 v13, s21, v13")
    for i in range(8): a(f"v_mul_f32 v{O+i}, v{O+i}, v{V_T}")
    for g in range(2):
        r = O + 4 * g; tmp = FB + 2 * g
        a(f"v_cvt_pk_bf16_f32 v{tmp}, v{r}, v{r+1}"); a(f"v_cvt_pk_bf16_f32 v{tmp+1}, v{r+2}, v{r+3}")
        a(f"buffer_store_dwordx2 {vr(tmp,2)}, v13, s[24:27], 0 offen offset:{g*16}")
    a.label(done); a("s_endpgm")
    txt = a.text().replace("v_mov_b32 v20, 0x3f80", "v_mov_b32 v9, 0x3f80")
    return txt, dict(name=name, vgpr=NV, sgpr=48, lds=KBY+VBY, threads=512, grid=256)
```

```python
from asmlib import *

def gen_gemm(name, jobs, WF, WT, FA, TB):
    a = A()
    NW = WF * WT
    NT = NW * 64
    TN = WF * FA * 32
    TM = WT * TB * 32
    XRS = 144
    WRS = TN * 2 + 64
    XB = TM * XRS
    WB = 64 * WRS
    BUF = XB + WB
    nxs = TM * 8 // NT
    nws = 64 * (TN // 8) // NT
    assert nxs >= 1 and nws >= 1
    xrows_per = NT // 8
    wcpr = TN // 8
    wrows_per = NT // wcpr
    V_T = 0
    V_XG = 1
    V_WG = V_XG + nxs
    V_XW = V_WG + nws
    V_WW = V_XW + 1
    V_XR = V_WW + 1
    V_WR = V_XR + 1
    V_CO = V_WR + 1
    V_TMP = V_CO + 1
    base = (V_TMP + 4 + 3) // 4 * 4
    V_BF = base
    V_AF = V_BF + 2 * TB * 4
    V_ST = V_AF + 2 * FA * 4
    V_ACC = (V_ST + (nxs + nws) * 4 + 15) // 16 * 16
    NV = V_ACC + FA * TB * 16
    assert NV <= 256, NV
    totalwg = sum(j['ntn'] * j['ntm'] for j in jobs)

    a.label(name)
    a("s_load_dwordx2 s[4:5], s[0:1], 104")
    a("s_load_dwordx2 s[6:7], s[0:1], 88")
    body = a.new("body")
    done = a.new("done")
    a(f"s_cmp_ge_u32 s2, {totalwg}")
    a(f"s_cbranch_scc1 {done}")
    first = 0
    labs = []
    for j in jobs:
        l = a.new("job"); labs.append(l)
        cnt = j['ntn'] * j['ntm']
        a(f"s_cmp_lt_u32 s2, {first + cnt}")
        a(f"s_cbranch_scc1 {l}")
        j['first'] = first
        first += cnt
    for j, l in zip(jobs, labs):
        a.label(l)
        def ld(dst, arg):
            if isinstance(arg, int):
                a(f"s_load_dwordx2 s[{dst}:{dst+1}], s[0:1], {arg}")
        ld(8, j['xarg']); ld(12, j['warg'])
        a("s_waitcnt lgkmcnt(0)")
        def mk(dst, arg, off, nrec):
            src = dst if isinstance(arg, int) else (4 if arg == 'ws' else 6)
            a(f"s_add_u32 s{dst}, s{src}, {off}")
            a(f"s_addc_u32 s{dst+1}, s{src+1}, 0")
            a(f"s_mov_b32 s{dst+2}, {nrec}")
            a(f"s_mov_b32 s{dst+3}, 0x00020000")
        mk(8, j['xarg'], j['xoff'], j['xbytes'])
        mk(12, j['warg'], j['woff'], j['wbytes'])
        mk(16, j['carg'], j['coff'], j['cbytes'])
        a(f"s_sub_u32 s20, s2, {j['first']}")
        ntn = j['ntn']; assert ntn & (ntn - 1) == 0
        a(f"s_and_b32 s21, s20, {ntn-1}")
        a(f"s_lshr_b32 s22, s20, {ntn.bit_length()-1}")
        a(f"s_mov_b32 s23, {j['xstride']}")
        a(f"s_mov_b32 s24, {j['wstride']}")
        a(f"s_mov_b32 s25, {j['cstride']}")
        a(f"s_mov_b32 s26, {j['K']//64}")
        a(f"s_mov_b32 s27, {j['nvalid']}")
        a(f"s_branch {body}")
    a.label(body)
    a(f"s_mul_i32 s21, s21, {TN}")
    a(f"s_mul_i32 s22, s22, {TM}")
    a(f"v_and_b32 v{V_TMP}, 7, v{V_T}")
    a(f"v_lshrrev_b32 v{V_TMP+1}, 3, v{V_T}")
    a(f"v_add_u32 v{V_TMP+2}, s22, v{V_TMP+1}")
    a(f"v_mul_lo_u32 v{V_TMP+2}, v{V_TMP+2}, s23")
    a(f"v_lshl_add_u32 v{V_XG}, v{V_TMP}, 4, v{V_TMP+2}")
    a(f"s_mul_i32 s28, s23, {xrows_per}")
    for i in range(1, nxs):
        a(f"v_add_u32 v{V_XG+i}, s28, v{V_XG+i-1}")
    a(f"s_movk_i32 s28, {XRS}")
    a(f"v_mul_lo_u32 v{V_XW}, v{V_TMP+1}, s28")
    a(f"v_lshl_add_u32 v{V_XW}, v{V_TMP}, 4, v{V_XW}")
    a(f"v_and_b32 v{V_TMP}, {wcpr-1}, v{V_T}")
    a(f"v_lshrrev_b32 v{V_TMP+1}, {wcpr.bit_length()-1}, v{V_T}")
    a(f"v_mul_lo_u32 v{V_TMP+2}, v{V_TMP+1}, s24")
    a(f"v_lshl_add_u32 v{V_WG}, v{V_TMP}, 4, v{V_TMP+2}")
    a(f"s_lshl_b32 s28, s21, 1")
    a(f"v_add_u32 v{V_WG}, s28, v{V_WG}")
    a(f"s_mul_i32 s28, s24, {wrows_per}")
    for i in range(1, nws):
        a(f"v_add_u32 v{V_WG+i}, s28, v{V_WG+i-1}")
    a(f"s_movk_i32 s28, {WRS}")
    a(f"v_mul_lo_u32 v{V_WW}, v{V_TMP+1}, s28")
    a(f"v_lshl_add_u32 v{V_WW}, v{V_TMP}, 4, v{V_WW}")
    a(f"v_add_u32 v{V_WW}, {XB}, v{V_WW}")
    a(f"v_lshrrev_b32 v{V_TMP}, 6, v{V_T}")
    a("s_nop 1")
    a(f"v_readfirstlane_b32 s29, v{V_TMP}")
    a(f"s_and_b32 s30, s29, {WF-1}")
    a(f"s_lshr_b32 s31, s29, {WF.bit_length()-1}")
    a(f"v_and_b32 v{V_TMP}, 63, v{V_T}")
    a(f"v_and_b32 v{V_TMP+1}, 31, v{V_T}")
    a(f"v_bfe_u32 v{V_TMP+2}, v{V_T}, 5, 1")
    a(f"s_mul_i32 s32, s31, {TB*32}")
    a(f"v_add_u32 v{V_XR}, s32, v{V_TMP+1}")
    a(f"s_movk_i32 s28, {XRS}")
    a(f"v_mul_lo_u32 v{V_XR}, v{V_XR}, s28")
    a(f"v_lshl_add_u32 v{V_XR}, v{V_TMP+2}, 4, v{V_XR}")
    a(f"s_add_u32 s32, s32, s22")
    a(f"v_add_u32 v{V_CO}, s32, v{V_TMP+1}")
    a(f"v_mul_lo_u32 v{V_CO}, v{V_CO}, s25")
    a(f"v_lshl_add_u32 v{V_CO}, v{V_TMP+2}, 3, v{V_CO}")
    a(f"s_mul_i32 s33, s30, {FA*32}")
    a(f"s_add_u32 s33, s33, s21")
    a(f"s_lshl_b32 s34, s33, 1")
    a(f"v_add_u32 v{V_CO}, s34, v{V_CO}")
    a(f"v_bfe_u32 v{V_TMP+1}, v{V_T}, 2, 2")
    a(f"v_lshl_add_u32 v{V_TMP+1}, v{V_TMP+2}, 3, v{V_TMP+1}")
    a(f"s_movk_i32 s28, {WRS}")
    a(f"v_mul_lo_u32 v{V_WR}, v{V_TMP+1}, s28")
    a(f"v_bfe_u32 v{V_TMP+1}, v{V_T}, 4, 1")
    a(f"v_lshl_add_u32 v{V_WR}, v{V_TMP+1}, 5, v{V_WR}")
    a(f"v_and_b32 v{V_TMP+1}, 3, v{V_T}")
    a(f"v_lshl_add_u32 v{V_WR}, v{V_TMP+1}, 3, v{V_WR}")
    a(f"s_mul_i32 s34, s30, {FA*64}")
    a(f"s_add_u32 s34, s34, {XB}")
    a(f"v_add_u32 v{V_WR}, s34, v{V_WR}")
    for i in range(FA * TB * 16):
        a(f"v_mov_b32 v{V_ACC+i}, 0")
    a("s_mov_b32 s35, 0")
    a("s_mov_b32 s36, 0")
    a("s_lshl_b32 s37, s24, 6")
    a(f"s_mov_b32 s38, {BUF}")
    def gload():
        for i in range(nxs):
            a(f"buffer_load_dwordx4 {vr(V_ST+4*i,4)}, v{V_XG+i}, s[8:11], s35 offen")
        for i in range(nws):
            a(f"buffer_load_dwordx4 {vr(V_ST+4*(nxs+i),4)}, v{V_WG+i}, s[12:15], s36 offen")
        a("s_add_u32 s35, s35, 128")
        a("s_add_u32 s36, s36, s37")
    def lwrite():
        a("s_waitcnt vmcnt(0)")
        for i in range(nxs):
            a(f"ds_write_b128 v{V_XW}, {vr(V_ST+4*i,4)} offset:{i*xrows_per*XRS}")
        for i in range(nws):
            a(f"ds_write_b128 v{V_WW}, {vr(V_ST+4*(nxs+i),4)} offset:{i*wrows_per*WRS}")
    def toggle():
        for r in (V_XW, V_WW, V_XR, V_WR):
            a(f"v_add_u32 v{r}, s38, v{r}")
        a("s_sub_u32 s38, 0, s38")
    def frags(ks, st):
        for t in range(TB):
            a(f"ds_read_b128 {vr(V_BF+(st*TB+t)*4,4)}, v{V_XR} offset:{t*32*XRS + ks*32}")
        for f in range(FA):
            for h in range(2):
                a(f"ds_read_b64_tr_b16 {vr(V_AF+(st*FA+f)*4+2*h,2)}, v{V_WR} offset:{(ks*16+4*h)*WRS + f*64}")
    gload()
    lwrite()
    a(f"v_add_u32 v{V_XW}, s38, v{V_XW}")
    a(f"v_add_u32 v{V_WW}, s38, v{V_WW}")
    a("s_waitcnt lgkmcnt(0)")
    a("s_barrier")
    loop = a.new("kloop")
    nold = a.new("nold"); nowr = a.new("nowr")
    a.label(loop)
    a("s_cmp_le_u32 s26, 1")
    a(f"s_cbranch_scc1 {nold}")
    gload()
    a.label(nold)
    frags(0, 0)
    for ks in range(4):
        st = ks & 1
        if ks < 3:
            frags(ks + 1, st ^ 1)
            a(f"s_waitcnt lgkmcnt({TB + 2*FA})")
        else:
            a("s_waitcnt lgkmcnt(0)")
        for f in range(FA):
            for t in range(TB):
                acc = V_ACC + (f * TB + t) * 16
                a(f"v_mfma_f32_32x32x16_bf16 {vr(acc,16)}, {vr(V_AF+(st*FA+f)*4,4)}, {vr(V_BF+(st*TB+t)*4,4)}, {vr(acc,16)}")
    a("s_cmp_le_u32 s26, 1")
    a(f"s_cbranch_scc1 {nowr}")
    lwrite()
    a.label(nowr)
    a(f"v_add_u32 v{V_XR}, s38, v{V_XR}")
    a(f"v_add_u32 v{V_WR}, s38, v{V_WR}")
    a("s_sub_u32 s38, 0, s38")
    a(f"v_add_u32 v{V_XW}, s38, v{V_XW}")
    a(f"v_add_u32 v{V_WW}, s38, v{V_WW}")
    a("s_waitcnt lgkmcnt(0)")
    a("s_barrier")
    a("s_sub_u32 s26, s26, 1")
    a("s_cmp_gt_u32 s26, 0")
    a(f"s_cbranch_scc1 {loop}")
    a("s_nop 15")
    a("s_nop 15")
    for f in range(FA):
        for g in range(4):
            sk = a.new("sk")
            a(f"s_add_u32 s34, s33, {f*32+8*g}")
            a("s_cmp_ge_u32 s34, s27")
            a(f"s_cbranch_scc1 {sk}")
            for t in range(TB):
                acc = V_ACC + (f * TB + t) * 16 + 4 * g
                tmp = V_BF + 2 * t
                a(f"v_cvt_pk_bf16_f32 v{tmp}, v{acc}, v{acc+1}")
                a(f"v_cvt_pk_bf16_f32 v{tmp+1}, v{acc+2}, v{acc+3}")
                if t > 0:
                    a(f"s_mul_i32 s39, s25, {32*t}")
                else:
                    a("s_mov_b32 s39, 0")
                a(f"buffer_store_dwordx2 {vr(tmp,2)}, v{V_CO}, s[16:19], s39 offen offset:{(f*32+8*g)*2}")
            a("s_nop 1")
            a.label(sk)
    a.label(done)
    a("s_endpgm")
    meta = dict(name=name, vgpr=NV, sgpr=48, lds=2 * BUF, threads=NT, grid=totalwg)
    return a.text(), meta
```

```python
from gemm import gen_gemm
from attn import *
P = "concat_heads__grouped_kv_mqa__compressed_kv_cla__prompt"
def job(xarg,xoff,xstride,xbytes,warg,wstride,wbytes,carg,coff,cstride,cbytes,K,ntn,ntm,nvalid):
    return dict(xarg=xarg,xoff=xoff,xstride=xstride,xbytes=xbytes,warg=warg,woff=0,wstride=wstride,wbytes=wbytes,carg=carg,coff=coff,cstride=cstride,cbytes=cbytes,K=K,ntn=ntn,ntm=ntm,nvalid=nvalid)
M2=2<<20; M16=16<<20
k1 = gen_gemm("proj_kernel", [
  job(40,0,1024,M2,56,8192,4<<20,'ws',QB_OFF,8192,M16,512,16,8,4096),
  job(48,0,1024,M2,64,8192,4<<20,'ws',KB_OFF,8192,M16,512,16,8,4096),
  job(48,0,1024,M2,72,8192,4<<20,'ws',VB_OFF,8192,M16,512,16,8,4096),
  job(0,0,1024,M2,8,1024,512*1024,'ws',QA_OFF,1024,M2,512,2,8,512),
  job(0,0,1024,M2,16,32,16384,'ws',KA_OFF,32,65536,512,1,8,16),
  job(0,0,1024,M2,24,32,16384,'ws',VA_OFF,32,65536,512,1,8,16),
], 2,4,4,2)
k2 = gen_attn_b("attnb_kernel")
k3 = gen_attn_a("attna_kernel")
k4 = gen_gemm("outp_kernel", [
  job('ws',CTX_OFF,8192,M16,80,1024,4<<20,'out',1024,2048,(4<<20)-1024,4096,8,32,512),
  job('ws',OA_OFF,1024,M2,32,1024,512*1024,'out',0,2048,4<<20,512,8,32,512),
], 2,2,1,1)
ks=[k1,k2,k3,k4]
hdr = open(f"cdna_kernels/{P}.s.ref").read().split("; Override")[0]
o = hdr
for t,m in ks:
    o += f"; @launch kernel={m['name']} grid=({m['grid']},1,1) block=({m['threads']},1,1) lds={m['lds']}\n"
o += '.amdgcn_target "amdgcn-amd-amdhsa--gfx950"\n.text\n'
for t,m in ks:
    o += f".globl {m['name']}\n.p2align 8\n.type {m['name']},@function\n" + t
o += '.section .rodata,"a"\n'
for t,m in ks:
    v=m['vgpr']
    o += f""".p2align 6
.amdhsa_kernel {m['name']}
  .amdhsa_next_free_vgpr {v}
  .amdhsa_next_free_sgpr {m['sgpr']}
  .amdhsa_accum_offset {(v+3)//4*4}
  .amdhsa_group_segment_fixed_size 0
  .amdhsa_kernarg_size 112
  .amdhsa_user_sgpr_count 2
  .amdhsa_user_sgpr_kernarg_segment_ptr 1
  .amdhsa_system_sgpr_workgroup_id_x 1
.end_amdhsa_kernel
"""
open(f"cdna_kernels/{P}.s","w").write(o)
```

```python
from asmlib import *

def gen_gemm(name, jobs, WF, WT, FA, TB, BK=64):
    a = A()
    NW = WF * WT
    NT = NW * 64
    TN = WF * FA * 32
    TM = WT * TB * 32
    XRS = BK*2+16
    WRS = TN * 2 + 64
    XB = TM * XRS
    WB = BK * WRS
    BUF = XB + WB
    XC = BK // 8
    nxs = TM * XC // NT
    nws = BK * (TN // 8) // NT
    assert nxs >= 1 and nws >= 1
    xrows_per = NT // XC
    wcpr = TN // 8
    wrows_per = NT // wcpr
    V_T = 0
    V_XG = 1
    V_WG = V_XG + nxs
    V_XW = V_WG + nws
    V_WW = V_XW + 1
    V_XR = V_WW + 1
    V_WR = V_XR + 1
    V_CO = V_WR + 1
    V_TMP = V_CO + 1
    base = (V_TMP + 4 + 3) // 4 * 4
    V_BF = base
    V_AF = V_BF + 2 * TB * 4
    V_ST = V_AF + 2 * FA * 4
    V_ACC = (V_ST + (nxs + nws) * 4 + 15) // 16 * 16
    NV = V_ACC + FA * TB * 16
    assert NV <= 256, NV
    totalwg = sum(j['ntn'] * j['ntm'] for j in jobs)

    a.label(name)
    a("s_load_dwordx2 s[4:5], s[0:1], 104")
    a("s_load_dwordx2 s[6:7], s[0:1], 88")
    body = a.new("body")
    done = a.new("done")
    a(f"s_cmp_ge_u32 s2, {totalwg}")
    a(f"s_cbranch_scc1 {done}")
    first = 0
    labs = []
    for j in jobs:
        l = a.new("job"); labs.append(l)
        cnt = j['ntn'] * j['ntm']
        a(f"s_cmp_lt_u32 s2, {first + cnt}")
        a(f"s_cbranch_scc1 {l}")
        j['first'] = first
        first += cnt
    for j, l in zip(jobs, labs):
        a.label(l)
        def ld(dst, arg):
            if isinstance(arg, int):
                a(f"s_load_dwordx2 s[{dst}:{dst+1}], s[0:1], {arg}")
        ld(8, j['xarg']); ld(12, j['warg'])
        a("s_waitcnt lgkmcnt(0)")
        def mk(dst, arg, off, nrec):
            src = dst if isinstance(arg, int) else (4 if arg == 'ws' else 6)
            a(f"s_add_u32 s{dst}, s{src}, {off}")
            a(f"s_addc_u32 s{dst+1}, s{src+1}, 0")
            a(f"s_mov_b32 s{dst+2}, {nrec}")
            a(f"s_mov_b32 s{dst+3}, 0x00020000")
        mk(8, j['xarg'], j['xoff'], j['xbytes'])
        mk(12, j['warg'], j['woff'], j['wbytes'])
        mk(16, j['carg'], j['coff'], j['cbytes'])
        a(f"s_sub_u32 s20, s2, {j['first']}")
        ntn = j['ntn']; assert ntn & (ntn - 1) == 0
        a(f"s_and_b32 s21, s20, {ntn-1}")
        a(f"s_lshr_b32 s22, s20, {ntn.bit_length()-1}")
        a(f"s_mov_b32 s23, {j['xstride']}")
        a(f"s_mov_b32 s24, {j['wstride']}")
        a(f"s_mov_b32 s25, {j['cstride']}")
        a(f"s_mov_b32 s26, {j['K']//BK}")
        a(f"s_mov_b32 s27, {j['nvalid']}")
        a(f"s_branch {body}")
    a.label(body)
    a(f"s_mul_i32 s21, s21, {TN}")
    a(f"s_mul_i32 s22, s22, {TM}")
    a(f"v_and_b32 v{V_TMP}, {XC-1}, v{V_T}")
    a(f"v_lshrrev_b32 v{V_TMP+1}, {XC.bit_length()-1}, v{V_T}")
    a(f"v_add_u32 v{V_TMP+2}, s22, v{V_TMP+1}")
    a(f"v_mul_lo_u32 v{V_TMP+2}, v{V_TMP+2}, s23")
    a(f"v_lshl_add_u32 v{V_XG}, v{V_TMP}, 4, v{V_TMP+2}")
    a(f"s_mul_i32 s28, s23, {xrows_per}")
    for i in range(1, nxs):
        a(f"v_add_u32 v{V_XG+i}, s28, v{V_XG+i-1}")
    a(f"s_movk_i32 s28, {XRS}")
    a(f"v_mul_lo_u32 v{V_XW}, v{V_TMP+1}, s28")
    a(f"v_lshl_add_u32 v{V_XW}, v{V_TMP}, 4, v{V_XW}")
    a(f"v_and_b32 v{V_TMP}, {wcpr-1}, v{V_T}")
    a(f"v_lshrrev_b32 v{V_TMP+1}, {wcpr.bit_length()-1}, v{V_T}")
    a(f"v_mul_lo_u32 v{V_TMP+2}, v{V_TMP+1}, s24")
    a(f"v_lshl_add_u32 v{V_WG}, v{V_TMP}, 4, v{V_TMP+2}")
    a(f"s_lshl_b32 s28, s21, 1")
    a(f"v_add_u32 v{V_WG}, s28, v{V_WG}")
    a(f"s_mul_i32 s28, s24, {wrows_per}")
    for i in range(1, nws):
        a(f"v_add_u32 v{V_WG+i}, s28, v{V_WG+i-1}")
    a(f"s_movk_i32 s28, {WRS}")
    a(f"v_mul_lo_u32 v{V_WW}, v{V_TMP+1}, s28")
    a(f"v_lshl_add_u32 v{V_WW}, v{V_TMP}, 4, v{V_WW}")
    a(f"v_add_u32 v{V_WW}, {XB}, v{V_WW}")
    a(f"v_lshrrev_b32 v{V_TMP}, 6, v{V_T}")
    a("s_nop 1")
    a(f"v_readfirstlane_b32 s29, v{V_TMP}")
    a(f"s_and_b32 s30, s29, {WF-1}")
    a(f"s_lshr_b32 s31, s29, {WF.bit_length()-1}")
    a(f"v_and_b32 v{V_TMP}, 63, v{V_T}")
    a(f"v_and_b32 v{V_TMP+1}, 31, v{V_T}")
    a(f"v_bfe_u32 v{V_TMP+2}, v{V_T}, 5, 1")
    a(f"s_mul_i32 s32, s31, {TB*32}")
    a(f"v_add_u32 v{V_XR}, s32, v{V_TMP+1}")
    a(f"s_movk_i32 s28, {XRS}")
    a(f"v_mul_lo_u32 v{V_XR}, v{V_XR}, s28")
    a(f"v_lshl_add_u32 v{V_XR}, v{V_TMP+2}, 4, v{V_XR}")
    a(f"s_add_u32 s32, s32, s22")
    a(f"v_add_u32 v{V_CO}, s32, v{V_TMP+1}")
    a(f"v_mul_lo_u32 v{V_CO}, v{V_CO}, s25")
    a(f"v_lshl_add_u32 v{V_CO}, v{V_TMP+2}, 3, v{V_CO}")
    a(f"s_mul_i32 s33, s30, {FA*32}")
    a(f"s_add_u32 s33, s33, s21")
    a(f"s_lshl_b32 s34, s33, 1")
    a(f"v_add_u32 v{V_CO}, s34, v{V_CO}")
    a(f"v_bfe_u32 v{V_TMP+1}, v{V_T}, 2, 2")
    a(f"v_lshl_add_u32 v{V_TMP+1}, v{V_TMP+2}, 3, v{V_TMP+1}")
    a(f"s_movk_i32 s28, {WRS}")
    a(f"v_mul_lo_u32 v{V_WR}, v{V_TMP+1}, s28")
    a(f"v_bfe_u32 v{V_TMP+1}, v{V_T}, 4, 1")
    a(f"v_lshl_add_u32 v{V_WR}, v{V_TMP+1}, 5, v{V_WR}")
    a(f"v_and_b32 v{V_TMP+1}, 3, v{V_T}")
    a(f"v_lshl_add_u32 v{V_WR}, v{V_TMP+1}, 3, v{V_WR}")
    a(f"s_mul_i32 s34, s30, {FA*64}")
    a(f"s_add_u32 s34, s34, {XB}")
    a(f"v_add_u32 v{V_WR}, s34, v{V_WR}")
    for i in range(FA * TB * 16):
        a(f"v_mov_b32 v{V_ACC+i}, 0")
    a("s_mov_b32 s35, 0")
    a("s_mov_b32 s36, 0")
    a(f"s_lshl_b32 s37, s24, {BK.bit_length()-1}")
    a(f"s_mov_b32 s38, {BUF}")
    def gload():
        for i in range(nxs):
            a(f"buffer_load_dwordx4 {vr(V_ST+4*i,4)}, v{V_XG+i}, s[8:11], s35 offen")
        for i in range(nws):
            a(f"buffer_load_dwordx4 {vr(V_ST+4*(nxs+i),4)}, v{V_WG+i}, s[12:15], s36 offen")
        a(f"s_add_u32 s35, s35, {BK*2}")
        a("s_add_u32 s36, s36, s37")
    def lwrite():
        a("s_waitcnt vmcnt(0)")
        for i in range(nxs):
            a(f"ds_write_b128 v{V_XW}, {vr(V_ST+4*i,4)} offset:{i*xrows_per*XRS}")
        for i in range(nws):
            a(f"ds_write_b128 v{V_WW}, {vr(V_ST+4*(nxs+i),4)} offset:{i*wrows_per*WRS}")
    def toggle():
        for r in (V_XW, V_WW, V_XR, V_WR):
            a(f"v_add_u32 v{r}, s38, v{r}")
        a("s_sub_u32 s38, 0, s38")
    def frags(ks, st):
        for t in range(TB):
            a(f"ds_read_b128 {vr(V_BF+(st*TB+t)*4,4)}, v{V_XR} offset:{t*32*XRS + ks*32}")
        for f in range(FA):
            for h in range(2):
                a(f"ds_read_b64_tr_b16 {vr(V_AF+(st*FA+f)*4+2*h,2)}, v{V_WR} offset:{(ks*16+4*h)*WRS + f*64}")
    gload()
    lwrite()
    a(f"v_add_u32 v{V_XW}, s38, v{V_XW}")
    a(f"v_add_u32 v{V_WW}, s38, v{V_WW}")
    a("s_waitcnt lgkmcnt(0)")
    a("s_barrier")
    loop = a.new("kloop")
    nold = a.new("nold"); nowr = a.new("nowr")
    a.label(loop)
    a("s_cmp_le_u32 s26, 1")
    a(f"s_cbranch_scc1 {nold}")
    gload()
    a.label(nold)
    frags(0, 0)
    NKS = BK // 16
    for ks in range(NKS):
        st = ks & 1
        if ks < NKS-1:
            frags(ks + 1, st ^ 1)
            a(f"s_waitcnt lgkmcnt({TB + 2*FA})")
        else:
            a("s_waitcnt lgkmcnt(0)")
        for f in range(FA):
            for t in range(TB):
                acc = V_ACC + (f * TB + t) * 16
                a(f"v_mfma_f32_32x32x16_bf16 {vr(acc,16)}, {vr(V_AF+(st*FA+f)*4,4)}, {vr(V_BF+(st*TB+t)*4,4)}, {vr(acc,16)}")
        if ks == NKS-2:
            a("s_cmp_le_u32 s26, 1")
            a(f"s_cbranch_scc1 {nowr}")
            lwrite()
            a.label(nowr)
    a(f"v_add_u32 v{V_XR}, s38, v{V_XR}")
    a(f"v_add_u32 v{V_WR}, s38, v{V_WR}")
    a("s_sub_u32 s38, 0, s38")
    a(f"v_add_u32 v{V_XW}, s38, v{V_XW}")
    a(f"v_add_u32 v{V_WW}, s38, v{V_WW}")
    a("s_waitcnt lgkmcnt(0)")
    a("s_barrier")
    a("s_sub_u32 s26, s26, 1")
    a("s_cmp_gt_u32 s26, 0")
    a(f"s_cbranch_scc1 {loop}")
    a("s_nop 15")
    a("s_nop 15")
    ERS = FA * 64 + 16
    a(f"s_mul_i32 s34, s29, {TB*32*ERS}")
    a(f"v_and_b32 v{V_TMP}, 31, v{V_T}")
    a(f"s_movk_i32 s28, {ERS}")
    a(f"v_mul_lo_u32 v{V_TMP}, v{V_TMP}, s28")
    a(f"v_bfe_u32 v{V_TMP+1}, v{V_T}, 5, 1")
    a(f"v_lshl_add_u32 v{V_TMP}, v{V_TMP+1}, 3, v{V_TMP}")
    a(f"v_add_u32 v{V_TMP}, s34, v{V_TMP}")
    for f in range(FA):
        for t in range(TB):
            for g in range(4):
                acc = V_ACC + (f * TB + t) * 16 + 4 * g
                a(f"v_cvt_pk_bf16_f32 v{acc}, v{acc}, v{acc+1}")
                a(f"v_cvt_pk_bf16_f32 v{acc+1}, v{acc+2}, v{acc+3}")
                a(f"ds_write_b64 v{V_TMP}, {vr(acc,2)} offset:{t*32*ERS + (f*32+8*g)*2}")
    cpr = FA * 4
    rpi = 64 // cpr
    a(f"v_and_b32 v{V_TMP+1}, 63, v{V_T}")
    a(f"v_lshrrev_b32 v{V_TMP+2}, {cpr.bit_length()-1}, v{V_TMP+1}")
    a(f"v_and_b32 v{V_TMP+1}, {cpr-1}, v{V_TMP+1}")
    a(f"v_mul_lo_u32 v{V_TMP}, v{V_TMP+2}, s28")
    a(f"v_lshl_add_u32 v{V_TMP}, v{V_TMP+1}, 4, v{V_TMP}")
    a(f"v_add_u32 v{V_TMP}, s34, v{V_TMP}")
    a(f"v_add_u32 v{V_TMP+2}, s32, v{V_TMP+2}")
    a(f"v_mul_lo_u32 v{V_CO}, v{V_TMP+2}, s25")
    a(f"v_lshl_add_u32 v{V_CO}, v{V_TMP+1}, 4, v{V_CO}")
    a(f"s_lshl_b32 s39, s33, 1")
    a(f"v_add_u32 v{V_CO}, s39, v{V_CO}")
    a(f"v_lshl_add_u32 v{V_TMP+1}, v{V_TMP+1}, 3, s33")
    a(f"v_cmp_gt_u32 vcc, s27, v{V_TMP+1}")
    a("s_waitcnt lgkmcnt(0)")
    nI = TB * 32 // rpi
    for i in range(nI):
        a(f"ds_read_b128 {vr(V_ACC+4*i,4)}, v{V_TMP} offset:{i*rpi*ERS}")
    a("s_and_saveexec_b64 s[40:41], vcc")
    a(f"s_mul_i32 s34, s25, {rpi}")
    a("s_mov_b32 s39, 0")
    for i in range(nI):
        a(f"s_waitcnt lgkmcnt({nI-1-i})")
        a(f"buffer_store_dwordx4 {vr(V_ACC+4*i,4)}, v{V_CO}, s[16:19], s39 offen")
        a("s_add_u32 s39, s39, s34")
    a("s_mov_b64 exec, s[40:41]")
    a.label(done)
    a("s_endpgm")
    meta = dict(name=name, vgpr=NV, sgpr=48, lds=2 * BUF, threads=NT, grid=totalwg)
    return a.text(), meta
```

```python
from gemm import gen_gemm
from attn import *
import os,sys
PC=eval(os.environ.get("PC","(2,4,4,2)")); OC=eval(os.environ.get("OC","(2,2,1,1,128)")); OUT=os.environ.get("OUT")
P = "concat_heads__grouped_kv_mqa__compressed_kv_cla__prompt"
def job(xarg,xoff,xstride,xbytes,warg,wstride,wbytes,carg,coff,cstride,cbytes,K,ntn,ntm,nvalid):
    return dict(xarg=xarg,xoff=xoff,xstride=xstride,xbytes=xbytes,warg=warg,woff=0,wstride=wstride,wbytes=wbytes,carg=carg,coff=coff,cstride=cstride,cbytes=cbytes,K=K,ntn=ntn,ntm=ntm,nvalid=nvalid)
M2=2<<20; M16=16<<20
k1 = gen_gemm("proj_kernel", [
  job(40,0,1024,M2,56,8192,4<<20,'ws',QB_OFF,8192,M16,512,4096//(PC[0]*PC[2]*32),2048//(PC[1]*PC[3]*32),4096),
  job(48,0,1024,M2,64,8192,4<<20,'ws',KB_OFF,8192,M16,512,4096//(PC[0]*PC[2]*32),2048//(PC[1]*PC[3]*32),4096),
  job(48,0,1024,M2,72,8192,4<<20,'ws',VB_OFF,8192,M16,512,4096//(PC[0]*PC[2]*32),2048//(PC[1]*PC[3]*32),4096),
  job(0,0,1024,M2,8,1024,512*1024,'ws',QA_OFF,1024,M2,512,max(1,512//(PC[0]*PC[2]*32)),2048//(PC[1]*PC[3]*32),512),
  job(0,0,1024,M2,16,32,16384,'ws',KA_OFF,32,65536,512,1,2048//(PC[1]*PC[3]*32),16),
  job(0,0,1024,M2,24,32,16384,'ws',VA_OFF,32,65536,512,1,2048//(PC[1]*PC[3]*32),16),
], *PC)
k2 = gen_attn_b("attnb_kernel")
k3 = gen_attn_a("attna_kernel")
k4 = gen_gemm("outp_kernel", [
  job('ws',CTX_OFF,8192,M16,80,1024,4<<20,'out',1024,2048,(4<<20)-1024,4096,512//(OC[0]*OC[2]*32),2048//(OC[1]*OC[3]*32),512),
  job('ws',OA_OFF,1024,M2,32,1024,512*1024,'out',0,2048,4<<20,512,512//(OC[0]*OC[2]*32),2048//(OC[1]*OC[3]*32),512),
], *OC)
ks=[k1,k2,k3,k4]
hdr = open(f"cdna_kernels/{P}.s.ref").read().split("; Override")[0]
o = hdr
for t,m in ks:
    o += f"; @launch kernel={m['name']} grid=({m['grid']},1,1) block=({m['threads']},1,1) lds={m['lds']}\n"
o += '.amdgcn_target "amdgcn-amd-amdhsa--gfx950"\n.text\n'
for t,m in ks:
    o += f".globl {m['name']}\n.p2align 8\n.type {m['name']},@function\n" + t
o += '.section .rodata,"a"\n'
for t,m in ks:
    v=m['vgpr']
    o += f""".p2align 6
.amdhsa_kernel {m['name']}
  .amdhsa_next_free_vgpr {v}
  .amdhsa_next_free_sgpr {m['sgpr']}
  .amdhsa_accum_offset {(v+3)//4*4}
  .amdhsa_group_segment_fixed_size 0
  .amdhsa_kernarg_size 112
  .amdhsa_user_sgpr_count 2
  .amdhsa_user_sgpr_kernarg_segment_ptr 1
  .amdhsa_system_sgpr_workgroup_id_x 1
.end_amdhsa_kernel
"""
open(OUT or f"cdna_kernels/{P}.s","w").write(o)
```

```python
from asmlib import *
import math
QB_OFF=0; KB_OFF=16<<20; VB_OFF=32<<20; QA_OFF=48<<20; KA_OFF=50<<20; VA_OFF=51<<20; OA_OFF=52<<20; CTX_OFF=56<<20

def f2u(x):
    import struct
    return struct.unpack("<I", struct.pack("<f", x))[0]

def softmax_tile(a, S, n, V_M, V_L, V_T, OACC, no, P, sc_s, dosum=True):
    t = V_T
    a(f"v_max3_f32 v{t}, v{S}, v{S+1}, v{S+2}")
    i = 3
    while i + 1 < n:
        a(f"v_max3_f32 v{t}, v{t}, v{S+i}, v{S+i+1}"); i += 2
    if i < n:
        a(f"v_max_f32 v{t}, v{t}, v{S+i}")
    a(f"v_mov_b32 v{t+1}, v{t}")
    a("s_nop 1")
    a(f"v_permlane32_swap_b32 v{t}, v{t+1}")
    a(f"v_max_f32 v{t}, v{t}, v{t+1}")
    a(f"v_max_f32 v{t}, v{t}, v{V_M}")
    a(f"v_sub_f32 v{t+1}, v{V_M}, v{t}")
    a(f"v_mul_f32 v{t+1}, s{sc_s}, v{t+1}")
    a(f"v_exp_f32 v{t+1}, v{t+1}")
    a(f"v_mov_b32 v{V_M}, v{t}")
    a(f"v_mul_f32 v{t}, s{sc_s}, v{t}")
    for i in range(n):
        a(f"v_fma_f32 v{S+i}, v{S+i}, s{sc_s}, -v{t}")
    for i in range(n):
        a(f"v_exp_f32 v{S+i}, v{S+i}")
    if dosum: a(f"v_mul_f32 v{V_L}, v{V_L}, v{t+1}")
    for i in range(no):
        a(f"v_mul_f32 v{OACC+i}, v{OACC+i}, v{t+1}")
    for i in range(n if dosum else 0):
        a(f"v_add_f32 v{V_L}, v{V_L}, v{S+i}")
    for i in range(n // 2):
        a(f"v_cvt_pk_bf16_f32 v{P+i}, v{S+2*i}, v{S+2*i+1}")

def gen_attn_b(name):
    a = A()
    KRS = 272; VRS = 320
    KBY = 64 * KRS; VBY = 64 * VRS; BUF = KBY + VBY
    V_KG, V_VG, V_KW, V_VW, V_KR, V_VR, V_Q, V_M, V_L, V_T = 1, 2, 3, 4, 5, 6, 7, 8, 9, 10
    QF = 16; ST = 48; S = 80; P = 112; FB = 128; O = 160; NV = 224
    a.label(name)
    done = a.new("done")
    a("s_load_dwordx2 s[4:5], s[0:1], 104")
    a("s_cmp_ge_u32 s2, 512")
    a(f"s_cbranch_scc1 {done}")
    a("s_and_b32 s20, s2, 31")
    a("s_lshr_b32 s21, s2, 5")
    a("s_sub_u32 s21, 15, s21")
    a("s_waitcnt lgkmcnt(0)")
    for d, off in ((8, QB_OFF), (12, KB_OFF), (16, VB_OFF), (24, CTX_OFF)):
        a(f"s_add_u32 s{d}, s4, {off}"); a(f"s_addc_u32 s{d+1}, s5, 0")
        a(f"s_mov_b32 s{d+2}, {16<<20}"); a(f"s_mov_b32 s{d+3}, 0x00020000")
    a("s_lshl_b32 s22, s20, 8")
    a("v_lshrrev_b32 v11, 6, v0"); a("s_nop 1"); a("v_readfirstlane_b32 s23, v11")
    a("v_and_b32 v11, 15, v0"); a("v_lshrrev_b32 v12, 4, v0")
    a(f"v_lshlrev_b32 v{V_KG}, 13, v12"); a(f"v_lshl_add_u32 v{V_KG}, v11, 4, v{V_KG}")
    a(f"v_add_u32 v{V_KG}, s22, v{V_KG}")
    a(f"s_movk_i32 s28, {KRS}"); a(f"v_mul_lo_u32 v{V_KW}, v12, s28"); a(f"v_lshl_add_u32 v{V_KW}, v11, 4, v{V_KW}")
    a(f"s_movk_i32 s28, {VRS}"); a(f"v_mul_lo_u32 v{V_VW}, v12, s28"); a(f"v_lshl_add_u32 v{V_VW}, v11, 4, v{V_VW}")
    a(f"v_add_u32 v{V_VW}, {KBY}, v{V_VW}")
    a("v_and_b32 v11, 31, v0"); a("v_bfe_u32 v12, v0, 5, 1")
    a(f"s_movk_i32 s28, {KRS}"); a(f"v_mul_lo_u32 v{V_KR}, v11, s28"); a(f"v_lshl_add_u32 v{V_KR}, v12, 4, v{V_KR}")
    a("v_bfe_u32 v13, v0, 2, 2"); a("v_lshl_add_u32 v13, v12, 2, v13")
    a(f"s_movk_i32 s28, {VRS}"); a(f"v_mul_lo_u32 v{V_VR}, v13, s28")
    a("v_bfe_u32 v13, v0, 4, 1"); a(f"v_lshl_add_u32 v{V_VR}, v13, 5, v{V_VR}")
    a("v_and_b32 v13, 3, v0"); a(f"v_lshl_add_u32 v{V_VR}, v13, 3, v{V_VR}")
    a(f"v_add_u32 v{V_VR}, {KBY}, v{V_VR}")
    a("s_lshl_b32 s29, s21, 7"); a("s_lshl_b32 s30, s23, 5"); a("s_add_u32 s29, s29, s30")
    a(f"v_add_u32 v{V_Q}, s29, v11")
    a(f"v_lshlrev_b32 v13, 13, v{V_Q}"); a("v_lshl_add_u32 v13, v12, 4, v13"); a("v_add_u32 v13, s22, v13")
    for ks in range(8):
        a(f"buffer_load_dwordx4 {vr(QF+4*ks,4)}, v13, s[8:11], 0 offen offset:{ks*32}")
    a(f"v_lshlrev_b32 v14, 2, v12"); a(f"v_sub_u32 v14, v{V_Q}, v14")
    a(f"v_mov_b32 v{V_M}, 0xf149f2ca"); a(f"v_mov_b32 v{V_L}, 0")
    for i in range(64): a(f"v_mov_b32 v{O+i}, 0")
    a(f"s_mov_b32 s31, {f2u(128**-0.5*math.log2(math.e))}")
    a("s_lshl_b32 s32, s21, 1"); a("s_add_u32 s32, s32, 2")
    a("s_mov_b32 s33, 0")
    a("s_mov_b32 s35, 0")
    a(f"s_mov_b32 s38, {BUF}")
    def gload():
        for i in range(4):
            a(f"s_add_u32 s36, s35, {i<<17}")
            a(f"buffer_load_dwordx4 {vr(ST+4*i,4)}, v{V_KG}, s[12:15], s36 offen")
            a(f"buffer_load_dwordx4 {vr(ST+16+4*i,4)}, v{V_KG}, s[16:19], s36 offen")
        a(f"s_add_u32 s35, s35, {64<<13}")
    def lwrite():
        a("s_waitcnt vmcnt(0)")
        for i in range(4):
            a(f"ds_write_b128 v{V_KW}, {vr(ST+4*i,4)} offset:{i*16*KRS}")
            a(f"ds_write_b128 v{V_VW}, {vr(ST+16+4*i,4)} offset:{i*16*VRS}")
    gload(); lwrite()
    a(f"v_add_u32 v{V_KW}, s38, v{V_KW}"); a(f"v_add_u32 v{V_VW}, s38, v{V_VW}")
    a("s_waitcnt lgkmcnt(0)"); a("s_barrier")
    loop = a.new("loop"); nold = a.new("nold"); nowr = a.new("nowr"); nomask = a.new("nomask")
    a.label(loop)
    a("s_add_u32 s34, s33, 1"); a("s_cmp_ge_u32 s34, s32"); a(f"s_cbranch_scc1 {nold}")
    gload()
    a.label(nold)
    for t in range(2):
        for ks in range(8):
            a(f"ds_read_b128 {vr(FB+4*ks,4)}, v{V_KR} offset:{t*32*KRS+ks*32}")
        for ks in range(8):
            a(f"s_waitcnt lgkmcnt({7-ks})")
            c = "0" if ks == 0 else vr(S+16*t,16)
            a(f"v_mfma_f32_32x32x16_bf16 {vr(S+16*t,16)}, {vr(FB+4*ks,4)}, {vr(QF+4*ks,4)}, {c}")
    a("s_nop 15")
    a("s_add_u32 s34, s33, 2"); a("s_cmp_lt_u32 s34, s32"); a(f"s_cbranch_scc1 {nomask}")
    a("s_lshl_b32 s34, s33, 6")
    for t in range(2):
        for r in range(16):
            a(f"s_add_u32 s36, s34, {t*32+8*(r//4)+r%4}")
            a(f"v_cmp_lt_i32 vcc, v14, s36")
            a("s_nop 1")
            a(f"v_cndmask_b32 v{S+16*t+r}, v{S+16*t+r}, v{V_L+6}, vcc")
    a.label(nomask)
    softmax_tile(a, S, 32, V_M, V_L, V_T, O, 64, P, 31)
    def vfr(j, st):
        for dt in range(4):
            for h in range(2):
                a(f"ds_read_b64_tr_b16 {vr(FB+16*st+4*dt+2*h,2)}, v{V_VR} offset:{(16*j+8*h)*VRS+dt*64}")
    vfr(0, 0)
    for j in range(4):
        if j < 3:
            vfr(j + 1, (j + 1) & 1); a("s_waitcnt lgkmcnt(8)")
        else:
            a("s_waitcnt lgkmcnt(0)")
        for dt in range(4):
            a(f"v_mfma_f32_32x32x16_bf16 {vr(O+16*dt,16)}, {vr(FB+16*(j&1)+4*dt,4)}, {vr(P+4*j,4)}, {vr(O+16*dt,16)}")
    a("s_add_u32 s34, s33, 1"); a("s_cmp_ge_u32 s34, s32"); a(f"s_cbranch_scc1 {nowr}")
    lwrite()
    a.label(nowr)
    a(f"v_add_u32 v{V_KR}, s38, v{V_KR}"); a(f"v_add_u32 v{V_VR}, s38, v{V_VR}")
    a("s_sub_u32 s38, 0, s38")
    a(f"v_add_u32 v{V_KW}, s38, v{V_KW}"); a(f"v_add_u32 v{V_VW}, s38, v{V_VW}")
    a("s_waitcnt lgkmcnt(0)"); a("s_barrier")
    a("s_add_u32 s33, s33, 1"); a("s_cmp_lt_u32 s33, s32"); a(f"s_cbranch_scc1 {loop}")
    a("s_nop 15")
    a(f"v_mov_b32 v{V_T}, v{V_L}"); a("s_nop 1"); a(f"v_permlane32_swap_b32 v{V_T}, v{V_L}")
    a(f"v_add_f32 v{V_L}, v{V_L}, v{V_T}"); a(f"v_rcp_f32 v{V_L}, v{V_L}")
    a(f"v_lshlrev_b32 v13, 13, v{V_Q}"); a("v_lshl_add_u32 v13, v12, 3, v13"); a("v_add_u32 v13, s22, v13")
    for i in range(64): a(f"v_mul_f32 v{O+i}, v{O+i}, v{V_L}")
    for dt in range(4):
        for g in range(4):
            r = O + 16 * dt + 4 * g; tmp = FB + 2 * (dt * 4 + g)
            a(f"v_cvt_pk_bf16_f32 v{tmp}, v{r}, v{r+1}"); a(f"v_cvt_pk_bf16_f32 v{tmp+1}, v{r+2}, v{r+3}")
            a(f"buffer_store_dwordx2 {vr(tmp,2)}, v13, s[24:27], 0 offen offset:{(dt*32+8*g)*2}")
    a.label(done); a("s_endpgm")
    txt = a.text().replace(f"v_mov_b32 v{V_L}, 0\n", f"v_mov_b32 v{V_L}, 0\n    v_mov_b32 v{V_L+6}, 0xf149f2ca\n", 1)
    return txt, dict(name=name, vgpr=NV, sgpr=48, lds=2*BUF, threads=256, grid=512)


def gen_attn_a(name):
    a = A()
    KBY = 512 * 32; VBY = 512 * 64
    V_KR, V_VR, V_Q, V_M, V_L, V_T = 1, 2, 3, 4, 5, 6
    QF = 16; S = 32; P = 64; FB = 80; O = 112; NV = 128
    a.label(name)
    done = a.new("done")
    a("s_load_dwordx2 s[4:5], s[0:1], 104")
    a("s_cmp_ge_u32 s2, 512"); a(f"s_cbranch_scc1 {done}")
    a("s_waitcnt lgkmcnt(0)")
    for d, off, n in ((8, QA_OFF, 2<<20), (12, KA_OFF, 65536), (16, VA_OFF, 65536), (24, OA_OFF, 2<<20)):
        a(f"s_add_u32 s{d}, s4, {off}"); a(f"s_addc_u32 s{d+1}, s5, 0")
        a(f"s_mov_b32 s{d+2}, {n}"); a(f"s_mov_b32 s{d+3}, 0x00020000")
    a("v_lshrrev_b32 v11, 6, v0"); a("s_nop 1"); a("v_readfirstlane_b32 s23, v11")
    a("s_lshl_b32 s20, s2, 2"); a("s_add_u32 s20, s20, s23")
    a("s_lshr_b32 s21, s20, 6"); a("s_and_b32 s22, s20, 63")
    a("v_and_b32 v11, 31, v0"); a("v_bfe_u32 v12, v0, 5, 1")
    a("s_lshl_b32 s22, s22, 5"); a(f"v_add_u32 v{V_Q}, s22, v11")
    a("s_lshl_b32 s21, s21, 5")
    a(f"v_lshlrev_b32 v13, 10, v{V_Q}"); a("v_lshl_add_u32 v13, v12, 4, v13"); a("v_add_u32 v13, s21, v13")
    a(f"buffer_load_dwordx4 {vr(QF,4)}, v13, s[8:11], 0 offen")
    a(f"v_lshlrev_b32 v{V_KR}, 5, v11"); a(f"v_lshl_add_u32 v{V_KR}, v12, 4, v{V_KR}")
    a("v_bfe_u32 v13, v0, 2, 2"); a("v_lshl_add_u32 v13, v12, 2, v13")
    a(f"v_lshlrev_b32 v{V_VR}, 6, v13")
    a("v_bfe_u32 v13, v0, 4, 1"); a(f"v_lshl_add_u32 v{V_VR}, v13, 5, v{V_VR}")
    a("v_and_b32 v13, 3, v0"); a(f"v_lshl_add_u32 v{V_VR}, v13, 3, v{V_VR}")
    a(f"v_add_u32 v{V_VR}, {KBY}, v{V_VR}")
    a(f"v_mov_b32 v{V_M}, 0xf149f2ca")
    for i in range(16): a(f"v_mov_b32 v{O+i}, 0")
    a(f"s_mov_b32 s31, {f2u(0.25*math.log2(math.e))}")
    a("v_mov_b32 v20, 0x3f80"); a("v_mov_b32 v21, 0"); a("v_mov_b32 v22, 0"); a("v_mov_b32 v23, 0")
    for ph in range(4):
        a("s_barrier")
        a("v_lshlrev_b32 v13, 4, v0")
        for i in range(4):
            a(f"buffer_load_dwordx4 {vr(FB+4*i,4)}, v13, s[12:15], 0 offen offset:0" .replace("0 offen", f"s40 offen") if False else f"s_mov_b32 s40, {ph*16384+i*4096}")
            a(f"buffer_load_dwordx4 {vr(FB+4*i,4)}, v13, s[12:15], s40 offen")
            a(f"buffer_load_dwordx4 {vr(FB+16+4*i,4)}, v13, s[16:19], s40 offen")
        a("v_lshrrev_b32 v14, 1, v0"); a("v_lshlrev_b32 v14, 6, v14"); a("v_and_b32 v15, 1, v0")
        a("v_lshl_add_u32 v14, v15, 4, v14"); a(f"v_add_u32 v14, {KBY}, v14")
        a("s_waitcnt vmcnt(0)")
        for i in range(4):
            a(f"ds_write_b128 v13, {vr(FB+4*i,4)} offset:{i*4096}")
            a(f"ds_write_b128 v14, {vr(FB+16+4*i,4)} offset:{i*8192}")
        a("v_cmp_eq_u32 vcc, 0, v15"); a("s_nop 1"); a("v_cndmask_b32 v20, 0, v24, vcc".replace("v24", "v9"))
        for i in range(4):
            a(f"ds_write_b128 v14, v[20:23] offset:{i*8192+32}")
        a("s_waitcnt lgkmcnt(0)"); a("s_barrier")
        loop = a.new("loop")
        a("s_mov_b32 s33, 0")
        a.label(loop)
        a(f"v_add_u32 v13, s33, v{V_KR}")
        a("s_lshl_b32 s34, s33, 1"); a(f"v_add_u32 v14, s34, v{V_VR}")
        for t in range(2):
            a(f"ds_read_b128 {vr(FB+4*t,4)}, v13 offset:{t*1024}")
        for j in range(4):
            for h in range(2):
                a(f"ds_read_b64_tr_b16 {vr(FB+8+4*j+2*h,2)}, v14 offset:{(16*j+8*h)*64}")
        for t in range(2):
            a(f"s_waitcnt lgkmcnt({9-t})")
            a(f"v_mfma_f32_32x32x16_bf16 {vr(S+16*t,16)}, {vr(FB+4*t,4)}, {vr(QF,4)}, 0")
        a("s_nop 15")
        softmax_tile(a, S, 32, V_M, V_L, V_T, O, 16, P, 31, dosum=False)
        a("s_waitcnt lgkmcnt(0)")
        for j in range(4):
            a(f"v_mfma_f32_32x32x16_bf16 {vr(O,16)}, {vr(FB+8+4*j,4)}, {vr(P+4*j,4)}, {vr(O,16)}")
        a("s_add_u32 s33, s33, 2048"); a(f"s_cmp_lt_u32 s33, {KBY}"); a(f"s_cbranch_scc1 {loop}")
    a("s_nop 15")
    a(f"v_mov_b32 v{V_T}, v{O+8}"); a(f"v_mov_b32 v{V_L}, v{O+8}"); a("s_nop 1")
    a(f"v_permlane32_swap_b32 v{V_T}, v{V_L}")
    a(f"v_rcp_f32 v{V_T}, v{V_T}")
    a(f"v_lshlrev_b32 v13, 10, v{V_Q}"); a("v_lshl_add_u32 v13, v12, 3, v13"); a("v_add_u32 v13, s21, v13")
    for i in range(8): a(f"v_mul_f32 v{O+i}, v{O+i}, v{V_T}")
    for g in range(2):
        r = O + 4 * g; tmp = FB + 2 * g
        a(f"v_cvt_pk_bf16_f32 v{tmp}, v{r}, v{r+1}"); a(f"v_cvt_pk_bf16_f32 v{tmp+1}, v{r+2}, v{r+3}")
        a(f"buffer_store_dwordx2 {vr(tmp,2)}, v13, s[24:27], 0 offen offset:{g*16}")
    a.label(done); a("s_endpgm")
    txt = a.text().replace("v_mov_b32 v20, 0x3f80", "v_mov_b32 v9, 0x3f80")
    return txt, dict(name=name, vgpr=NV, sgpr=48, lds=KBY+VBY, threads=256, grid=512)
```

```python
from gemm import gen_gemm
from attn import *
import os,sys
PC=eval(os.environ.get("PC","(2,4,4,2)")); OC=eval(os.environ.get("OC","(2,1,1,1,128)")); OUT=os.environ.get("OUT")
P = "concat_heads__grouped_kv_mqa__compressed_kv_cla__prompt"
def job(xarg,xoff,xstride,xbytes,warg,wstride,wbytes,carg,coff,cstride,cbytes,K,ntn,ntm,nvalid):
    return dict(xarg=xarg,xoff=xoff,xstride=xstride,xbytes=xbytes,warg=warg,woff=0,wstride=wstride,wbytes=wbytes,carg=carg,coff=coff,cstride=cstride,cbytes=cbytes,K=K,ntn=ntn,ntm=ntm,nvalid=nvalid)
M2=2<<20; M16=16<<20
k1 = gen_gemm("proj_kernel", [
  job(40,0,1024,M2,56,8192,4<<20,'ws',QB_OFF,8192,M16,512,4096//(PC[0]*PC[2]*32),2048//(PC[1]*PC[3]*32),4096),
  job(48,0,1024,M2,64,8192,4<<20,'ws',KB_OFF,8192,M16,512,4096//(PC[0]*PC[2]*32),2048//(PC[1]*PC[3]*32),4096),
  job(48,0,1024,M2,72,8192,4<<20,'ws',VB_OFF,8192,M16,512,4096//(PC[0]*PC[2]*32),2048//(PC[1]*PC[3]*32),4096),
  job(0,0,1024,M2,8,1024,512*1024,'ws',QA_OFF,1024,M2,512,max(1,512//(PC[0]*PC[2]*32)),2048//(PC[1]*PC[3]*32),512),
  job(0,0,1024,M2,16,32,16384,'ws',KA_OFF,32,65536,512,1,2048//(PC[1]*PC[3]*32),16),
  job(0,0,1024,M2,24,32,16384,'ws',VA_OFF,32,65536,512,1,2048//(PC[1]*PC[3]*32),16),
], *PC)
k2 = gen_attn_b("attnb_kernel")
k3 = gen_attn_a("attna_kernel")
k4 = gen_gemm("outp_kernel", [
  job('ws',CTX_OFF,8192,M16,80,1024,4<<20,'out',1024,2048,(4<<20)-1024,4096,512//(OC[0]*OC[2]*32),2048//(OC[1]*OC[3]*32),512),
  job('ws',OA_OFF,1024,M2,32,1024,512*1024,'out',0,2048,4<<20,512,512//(OC[0]*OC[2]*32),2048//(OC[1]*OC[3]*32),512),
], *OC)
tb,mb=k2; ta,ma=k3
ta=ta.replace("attna_kernel:","attna_part:\n    s_sub_u32 s2, s2, 512")
tb=tb.replace("attnb_kernel:\n","attnb_kernel:\n    s_cmp_ge_u32 s2, 512\n    s_cbranch_scc1 attna_part\n")
mb=dict(mb); mb['grid']=1024; mb['vgpr']=max(mb['vgpr'],ma['vgpr'])
ks=[k1,(tb+ta,mb),k4]
hdr = open(f"cdna_kernels/{P}.s.ref").read().split("; Override")[0]
o = hdr
for t,m in ks:
    o += f"; @launch kernel={m['name']} grid=({m['grid']},1,1) block=({m['threads']},1,1) lds={m['lds']}\n"
o += '.amdgcn_target "amdgcn-amd-amdhsa--gfx950"\n.text\n'
for t,m in ks:
    o += f".globl {m['name']}\n.p2align 8\n.type {m['name']},@function\n" + t
o += '.section .rodata,"a"\n'
for t,m in ks:
    v=m['vgpr']
    o += f""".p2align 6
.amdhsa_kernel {m['name']}
  .amdhsa_next_free_vgpr {v}
  .amdhsa_next_free_sgpr {m['sgpr']}
  .amdhsa_accum_offset {(v+3)//4*4}
  .amdhsa_group_segment_fixed_size 0
  .amdhsa_kernarg_size 112
  .amdhsa_user_sgpr_count 2
  .amdhsa_user_sgpr_kernarg_segment_ptr 1
  .amdhsa_system_sgpr_workgroup_id_x 1
.end_amdhsa_kernel
"""
open(OUT or f"cdna_kernels/{P}.s","w").write(o)
```

```python
from asmlib import *
import math
QB_OFF=0; KB_OFF=16<<20; VB_OFF=32<<20; QA_OFF=48<<20; KA_OFF=50<<20; VA_OFF=51<<20; OA_OFF=52<<20; CTX_OFF=56<<20

def f2u(x):
    import struct
    return struct.unpack("<I", struct.pack("<f", x))[0]

def softmax_tile(a, S, n, V_M, V_L, V_T, OACC, no, P, sc_s, dosum=True):
    t = V_T
    a(f"v_max3_f32 v{t}, v{S}, v{S+1}, v{S+2}")
    i = 3
    while i + 1 < n:
        a(f"v_max3_f32 v{t}, v{t}, v{S+i}, v{S+i+1}"); i += 2
    if i < n:
        a(f"v_max_f32 v{t}, v{t}, v{S+i}")
    a(f"v_mov_b32 v{t+1}, v{t}")
    a("s_nop 1")
    a(f"v_permlane32_swap_b32 v{t}, v{t+1}")
    a(f"v_max_f32 v{t}, v{t}, v{t+1}")
    a(f"v_max_f32 v{t}, v{t}, v{V_M}")
    a(f"v_cmp_gt_f32 vcc, v{t}, v{V_M}")
    a(f"v_sub_f32 v{t+1}, v{V_M}, v{t}")
    a(f"v_mul_f32 v{t+1}, s{sc_s}, v{t+1}")
    a(f"v_exp_f32 v{t+1}, v{t+1}")
    a(f"v_mov_b32 v{V_M}, v{t}")
    a(f"v_mul_f32 v{t}, s{sc_s}, v{t}")
    for i in range(n):
        a(f"v_fma_f32 v{S+i}, v{S+i}, s{sc_s}, -v{t}")
    for i in range(n):
        a(f"v_exp_f32 v{S+i}, v{S+i}")
    sk = a.new("norescale")
    a(f"s_cbranch_vccz {sk}")
    if dosum: a(f"v_mul_f32 v{V_L}, v{V_L}, v{t+1}")
    for i in range(no):
        a(f"v_mul_f32 v{OACC+i}, v{OACC+i}, v{t+1}")
    a.label(sk)
    for i in range(n if dosum else 0):
        a(f"v_add_f32 v{V_L}, v{V_L}, v{S+i}")
    for i in range(n // 2):
        a(f"v_cvt_pk_bf16_f32 v{P+i}, v{S+2*i}, v{S+2*i+1}")

def gen_attn_b(name):
    a = A()
    KRS = 272; VRS = 320
    KBY = 64 * KRS; VBY = 64 * VRS; BUF = KBY + VBY
    V_KG, V_VG, V_KW, V_VW, V_KR, V_VR, V_Q, V_M, V_L, V_T = 1, 2, 3, 4, 5, 6, 7, 8, 9, 10
    QF = 16; ST = 48; S = 80; P = 112; FB = 128; O = 160; NV = 224
    a.label(name)
    done = a.new("done")
    a("s_load_dwordx2 s[4:5], s[0:1], 104")
    a("s_cmp_ge_u32 s2, 512")
    a(f"s_cbranch_scc1 {done}")
    a("s_and_b32 s20, s2, 31")
    a("s_lshr_b32 s21, s2, 5")
    a("s_sub_u32 s21, 15, s21")
    a("s_waitcnt lgkmcnt(0)")
    for d, off in ((8, QB_OFF), (12, KB_OFF), (16, VB_OFF), (24, CTX_OFF)):
        a(f"s_add_u32 s{d}, s4, {off}"); a(f"s_addc_u32 s{d+1}, s5, 0")
        a(f"s_mov_b32 s{d+2}, {16<<20}"); a(f"s_mov_b32 s{d+3}, 0x00020000")
    a("s_lshl_b32 s22, s20, 8")
    a("v_lshrrev_b32 v11, 6, v0"); a("s_nop 1"); a("v_readfirstlane_b32 s23, v11")
    a("v_and_b32 v11, 15, v0"); a("v_lshrrev_b32 v12, 4, v0")
    a(f"v_lshlrev_b32 v{V_KG}, 13, v12"); a(f"v_lshl_add_u32 v{V_KG}, v11, 4, v{V_KG}")
    a(f"v_add_u32 v{V_KG}, s22, v{V_KG}")
    a(f"s_movk_i32 s28, {KRS}"); a(f"v_mul_lo_u32 v{V_KW}, v12, s28"); a(f"v_lshl_add_u32 v{V_KW}, v11, 4, v{V_KW}")
    a(f"s_movk_i32 s28, {VRS}"); a(f"v_mul_lo_u32 v{V_VW}, v12, s28"); a(f"v_lshl_add_u32 v{V_VW}, v11, 4, v{V_VW}")
    a(f"v_add_u32 v{V_VW}, {KBY}, v{V_VW}")
    a("v_and_b32 v11, 31, v0"); a("v_bfe_u32 v12, v0, 5, 1")
    a(f"s_movk_i32 s28, {KRS}"); a(f"v_mul_lo_u32 v{V_KR}, v11, s28"); a(f"v_lshl_add_u32 v{V_KR}, v12, 4, v{V_KR}")
    a("v_bfe_u32 v13, v0, 2, 2"); a("v_lshl_add_u32 v13, v12, 2, v13")
    a(f"s_movk_i32 s28, {VRS}"); a(f"v_mul_lo_u32 v{V_VR}, v13, s28")
    a("v_bfe_u32 v13, v0, 4, 1"); a(f"v_lshl_add_u32 v{V_VR}, v13, 5, v{V_VR}")
    a("v_and_b32 v13, 3, v0"); a(f"v_lshl_add_u32 v{V_VR}, v13, 3, v{V_VR}")
    a(f"v_add_u32 v{V_VR}, {KBY}, v{V_VR}")
    a("s_lshl_b32 s29, s21, 7"); a("s_lshl_b32 s30, s23, 5"); a("s_add_u32 s29, s29, s30")
    a(f"v_add_u32 v{V_Q}, s29, v11")
    a(f"v_lshlrev_b32 v13, 13, v{V_Q}"); a("v_lshl_add_u32 v13, v12, 4, v13"); a("v_add_u32 v13, s22, v13")
    for ks in range(8):
        a(f"buffer_load_dwordx4 {vr(QF+4*ks,4)}, v13, s[8:11], 0 offen offset:{ks*32}")
    a(f"v_lshlrev_b32 v14, 2, v12"); a(f"v_sub_u32 v14, v{V_Q}, v14")
    a(f"v_mov_b32 v{V_M}, 0xf149f2ca"); a(f"v_mov_b32 v{V_L}, 0")
    for i in range(64): a(f"v_mov_b32 v{O+i}, 0")
    a(f"s_mov_b32 s31, {f2u(128**-0.5*math.log2(math.e))}")
    a("s_lshl_b32 s32, s21, 1"); a("s_add_u32 s32, s32, 2")
    a("s_mov_b32 s33, 0")
    a("s_mov_b32 s35, 0")
    a(f"s_mov_b32 s38, {BUF}")
    def gload():
        for i in range(4):
            a(f"s_add_u32 s36, s35, {i<<17}")
            a(f"buffer_load_dwordx4 {vr(ST+4*i,4)}, v{V_KG}, s[12:15], s36 offen")
            a(f"buffer_load_dwordx4 {vr(ST+16+4*i,4)}, v{V_KG}, s[16:19], s36 offen")
        a(f"s_add_u32 s35, s35, {64<<13}")
    def lwrite():
        a("s_waitcnt vmcnt(0)")
        for i in range(4):
            a(f"ds_write_b128 v{V_KW}, {vr(ST+4*i,4)} offset:{i*16*KRS}")
            a(f"ds_write_b128 v{V_VW}, {vr(ST+16+4*i,4)} offset:{i*16*VRS}")
    gload(); lwrite()
    a(f"v_add_u32 v{V_KW}, s38, v{V_KW}"); a(f"v_add_u32 v{V_VW}, s38, v{V_VW}")
    a("s_waitcnt lgkmcnt(0)"); a("s_barrier")
    loop = a.new("loop"); nold = a.new("nold"); nowr = a.new("nowr"); nomask = a.new("nomask")
    a.label(loop)
    a("s_add_u32 s34, s33, 1"); a("s_cmp_ge_u32 s34, s32"); a(f"s_cbranch_scc1 {nold}")
    gload()
    a.label(nold)
    for t in range(2):
        for ks in range(8):
            a(f"ds_read_b128 {vr(FB+4*ks,4)}, v{V_KR} offset:{t*32*KRS+ks*32}")
        for ks in range(8):
            a(f"s_waitcnt lgkmcnt({7-ks})")
            c = "0" if ks == 0 else vr(S+16*t,16)
            a(f"v_mfma_f32_32x32x16_bf16 {vr(S+16*t,16)}, {vr(FB+4*ks,4)}, {vr(QF+4*ks,4)}, {c}")
    a("s_nop 15")
    a("s_add_u32 s34, s33, 2"); a("s_cmp_lt_u32 s34, s32"); a(f"s_cbranch_scc1 {nomask}")
    a("s_lshl_b32 s34, s33, 6")
    for t in range(2):
        for r in range(16):
            a(f"s_add_u32 s36, s34, {t*32+8*(r//4)+r%4}")
            a(f"v_cmp_lt_i32 vcc, v14, s36")
            a("s_nop 1")
            a(f"v_cndmask_b32 v{S+16*t+r}, v{S+16*t+r}, v{V_L+6}, vcc")
    a.label(nomask)
    softmax_tile(a, S, 32, V_M, V_L, V_T, O, 64, P, 31)
    def vfr(j, st):
        for dt in range(4):
            for h in range(2):
                a(f"ds_read_b64_tr_b16 {vr(FB+16*st+4*dt+2*h,2)}, v{V_VR} offset:{(16*j+8*h)*VRS+dt*64}")
    vfr(0, 0)
    for j in range(4):
        if j < 3:
            vfr(j + 1, (j + 1) & 1); a("s_waitcnt lgkmcnt(8)")
        else:
            a("s_waitcnt lgkmcnt(0)")
        for dt in range(4):
            a(f"v_mfma_f32_32x32x16_bf16 {vr(O+16*dt,16)}, {vr(FB+16*(j&1)+4*dt,4)}, {vr(P+4*j,4)}, {vr(O+16*dt,16)}")
    a("s_add_u32 s34, s33, 1"); a("s_cmp_ge_u32 s34, s32"); a(f"s_cbranch_scc1 {nowr}")
    lwrite()
    a.label(nowr)
    a(f"v_add_u32 v{V_KR}, s38, v{V_KR}"); a(f"v_add_u32 v{V_VR}, s38, v{V_VR}")
    a("s_sub_u32 s38, 0, s38")
    a(f"v_add_u32 v{V_KW}, s38, v{V_KW}"); a(f"v_add_u32 v{V_VW}, s38, v{V_VW}")
    a("s_waitcnt lgkmcnt(0)"); a("s_barrier")
    a("s_add_u32 s33, s33, 1"); a("s_cmp_lt_u32 s33, s32"); a(f"s_cbranch_scc1 {loop}")
    a("s_nop 15")
    a(f"v_mov_b32 v{V_T}, v{V_L}"); a("s_nop 1"); a(f"v_permlane32_swap_b32 v{V_T}, v{V_L}")
    a(f"v_add_f32 v{V_L}, v{V_L}, v{V_T}"); a(f"v_rcp_f32 v{V_L}, v{V_L}")
    a(f"v_lshlrev_b32 v13, 13, v{V_Q}"); a("v_lshl_add_u32 v13, v12, 3, v13"); a("v_add_u32 v13, s22, v13")
    for i in range(64): a(f"v_mul_f32 v{O+i}, v{O+i}, v{V_L}")
    for dt in range(4):
        for g in range(4):
            r = O + 16 * dt + 4 * g; tmp = FB + 2 * (dt * 4 + g)
            a(f"v_cvt_pk_bf16_f32 v{tmp}, v{r}, v{r+1}"); a(f"v_cvt_pk_bf16_f32 v{tmp+1}, v{r+2}, v{r+3}")
            a(f"buffer_store_dwordx2 {vr(tmp,2)}, v13, s[24:27], 0 offen offset:{(dt*32+8*g)*2}")
    a.label(done); a("s_endpgm")
    txt = a.text().replace(f"v_mov_b32 v{V_L}, 0\n", f"v_mov_b32 v{V_L}, 0\n    v_mov_b32 v{V_L+6}, 0xf149f2ca\n", 1)
    return txt, dict(name=name, vgpr=NV, sgpr=48, lds=2*BUF, threads=256, grid=512)


def gen_attn_a(name):
    a = A()
    KBY = 512 * 32; VBY = 512 * 64
    V_KR, V_VR, V_Q, V_M, V_L, V_T = 1, 2, 3, 4, 5, 6
    QF = 16; S = 32; P = 64; FB = 80; O = 112; NV = 128
    a.label(name)
    done = a.new("done")
    a("s_load_dwordx2 s[4:5], s[0:1], 104")
    a("s_cmp_ge_u32 s2, 512"); a(f"s_cbranch_scc1 {done}")
    a("s_waitcnt lgkmcnt(0)")
    for d, off, n in ((8, QA_OFF, 2<<20), (12, KA_OFF, 65536), (16, VA_OFF, 65536), (24, OA_OFF, 2<<20)):
        a(f"s_add_u32 s{d}, s4, {off}"); a(f"s_addc_u32 s{d+1}, s5, 0")
        a(f"s_mov_b32 s{d+2}, {n}"); a(f"s_mov_b32 s{d+3}, 0x00020000")
    a("v_lshrrev_b32 v11, 6, v0"); a("s_nop 1"); a("v_readfirstlane_b32 s23, v11")
    a("s_lshl_b32 s20, s2, 2"); a("s_add_u32 s20, s20, s23")
    a("s_lshr_b32 s21, s20, 6"); a("s_and_b32 s22, s20, 63")
    a("v_and_b32 v11, 31, v0"); a("v_bfe_u32 v12, v0, 5, 1")
    a("s_lshl_b32 s22, s22, 5"); a(f"v_add_u32 v{V_Q}, s22, v11")
    a("s_lshl_b32 s21, s21, 5")
    a(f"v_lshlrev_b32 v13, 10, v{V_Q}"); a("v_lshl_add_u32 v13, v12, 4, v13"); a("v_add_u32 v13, s21, v13")
    a(f"buffer_load_dwordx4 {vr(QF,4)}, v13, s[8:11], 0 offen")
    a(f"v_lshlrev_b32 v{V_KR}, 5, v11"); a(f"v_lshl_add_u32 v{V_KR}, v12, 4, v{V_KR}")
    a("v_bfe_u32 v13, v0, 2, 2"); a("v_lshl_add_u32 v13, v12, 2, v13")
    a(f"v_lshlrev_b32 v{V_VR}, 6, v13")
    a("v_bfe_u32 v13, v0, 4, 1"); a(f"v_lshl_add_u32 v{V_VR}, v13, 5, v{V_VR}")
    a("v_and_b32 v13, 3, v0"); a(f"v_lshl_add_u32 v{V_VR}, v13, 3, v{V_VR}")
    a(f"v_add_u32 v{V_VR}, {KBY}, v{V_VR}")
    a(f"v_mov_b32 v{V_M}, 0xf149f2ca")
    for i in range(16): a(f"v_mov_b32 v{O+i}, 0")
    a(f"s_mov_b32 s31, {f2u(0.25*math.log2(math.e))}")
    a("v_mov_b32 v20, 0x3f80"); a("v_mov_b32 v21, 0"); a("v_mov_b32 v22, 0"); a("v_mov_b32 v23, 0")
    for ph in range(4):
        a("s_barrier")
        a("v_lshlrev_b32 v13, 4, v0")
        for i in range(4):
            a(f"buffer_load_dwordx4 {vr(FB+4*i,4)}, v13, s[12:15], 0 offen offset:0" .replace("0 offen", f"s40 offen") if False else f"s_mov_b32 s40, {ph*16384+i*4096}")
            a(f"buffer_load_dwordx4 {vr(FB+4*i,4)}, v13, s[12:15], s40 offen")
            a(f"buffer_load_dwordx4 {vr(FB+16+4*i,4)}, v13, s[16:19], s40 offen")
        a("v_lshrrev_b32 v14, 1, v0"); a("v_lshlrev_b32 v14, 6, v14"); a("v_and_b32 v15, 1, v0")
        a("v_lshl_add_u32 v14, v15, 4, v14"); a(f"v_add_u32 v14, {KBY}, v14")
        a("s_waitcnt vmcnt(0)")
        for i in range(4):
            a(f"ds_write_b128 v13, {vr(FB+4*i,4)} offset:{i*4096}")
            a(f"ds_write_b128 v14, {vr(FB+16+4*i,4)} offset:{i*8192}")
        a("v_cmp_eq_u32 vcc, 0, v15"); a("s_nop 1"); a("v_cndmask_b32 v20, 0, v24, vcc".replace("v24", "v9"))
        for i in range(4):
            a(f"ds_write_b128 v14, v[20:23] offset:{i*8192+32}")
        a("s_waitcnt lgkmcnt(0)"); a("s_barrier")
        loop = a.new("loop")
        a("s_mov_b32 s33, 0")
        a.label(loop)
        a(f"v_add_u32 v13, s33, v{V_KR}")
        a("s_lshl_b32 s34, s33, 1"); a(f"v_add_u32 v14, s34, v{V_VR}")
        for t in range(2):
            a(f"ds_read_b128 {vr(FB+4*t,4)}, v13 offset:{t*1024}")
        for j in range(4):
            for h in range(2):
                a(f"ds_read_b64_tr_b16 {vr(FB+8+4*j+2*h,2)}, v14 offset:{(16*j+8*h)*64}")
        for t in range(2):
            a(f"s_waitcnt lgkmcnt({9-t})")
            a(f"v_mfma_f32_32x32x16_bf16 {vr(S+16*t,16)}, {vr(FB+4*t,4)}, {vr(QF,4)}, 0")
        a("s_nop 15")
        softmax_tile(a, S, 32, V_M, V_L, V_T, O, 16, P, 31, dosum=False)
        a("s_waitcnt lgkmcnt(0)")
        for j in range(4):
            a(f"v_mfma_f32_32x32x16_bf16 {vr(O,16)}, {vr(FB+8+4*j,4)}, {vr(P+4*j,4)}, {vr(O,16)}")
        a("s_add_u32 s33, s33, 2048"); a(f"s_cmp_lt_u32 s33, {KBY}"); a(f"s_cbranch_scc1 {loop}")
    a("s_nop 15")
    a(f"v_mov_b32 v{V_T}, v{O+8}"); a(f"v_mov_b32 v{V_L}, v{O+8}"); a("s_nop 1")
    a(f"v_permlane32_swap_b32 v{V_T}, v{V_L}")
    a(f"v_rcp_f32 v{V_T}, v{V_T}")
    a(f"v_lshlrev_b32 v13, 10, v{V_Q}"); a("v_lshl_add_u32 v13, v12, 3, v13"); a("v_add_u32 v13, s21, v13")
    for i in range(8): a(f"v_mul_f32 v{O+i}, v{O+i}, v{V_T}")
    for g in range(2):
        r = O + 4 * g; tmp = FB + 2 * g
        a(f"v_cvt_pk_bf16_f32 v{tmp}, v{r}, v{r+1}"); a(f"v_cvt_pk_bf16_f32 v{tmp+1}, v{r+2}, v{r+3}")
        a(f"buffer_store_dwordx2 {vr(tmp,2)}, v13, s[24:27], 0 offen offset:{g*16}")
    a.label(done); a("s_endpgm")
    txt = a.text().replace("v_mov_b32 v20, 0x3f80", "v_mov_b32 v9, 0x3f80")
    return txt, dict(name=name, vgpr=NV, sgpr=48, lds=KBY+VBY, threads=256, grid=512)
```

```python
from asmlib import *
import math
QB_OFF=0; KB_OFF=16<<20; VB_OFF=32<<20; QA_OFF=48<<20; KA_OFF=50<<20; VA_OFF=51<<20; OA_OFF=52<<20; CTX_OFF=56<<20

def f2u(x):
    import struct
    return struct.unpack("<I", struct.pack("<f", x))[0]

def softmax_tile(a, S, n, V_M, V_L, V_T, OACC, no, P, sc_s, dosum=True):
    t = V_T
    a(f"v_max3_f32 v{t}, v{S}, v{S+1}, v{S+2}")
    i = 3
    while i + 1 < n:
        a(f"v_max3_f32 v{t}, v{t}, v{S+i}, v{S+i+1}"); i += 2
    if i < n:
        a(f"v_max_f32 v{t}, v{t}, v{S+i}")
    a(f"v_mov_b32 v{t+1}, v{t}")
    a("s_nop 1")
    a(f"v_permlane32_swap_b32 v{t}, v{t+1}")
    a(f"v_max_f32 v{t}, v{t}, v{t+1}")
    a(f"v_max_f32 v{t}, v{t}, v{V_M}")
    a(f"v_cmp_gt_f32 vcc, v{t}, v{V_M}")
    a(f"v_sub_f32 v{t+1}, v{V_M}, v{t}")
    a(f"v_mul_f32 v{t+1}, s{sc_s}, v{t+1}")
    a(f"v_exp_f32 v{t+1}, v{t+1}")
    a(f"v_mov_b32 v{V_M}, v{t}")
    a(f"v_mul_f32 v{t}, s{sc_s}, v{t}")
    for i in range(n):
        a(f"v_fma_f32 v{S+i}, v{S+i}, s{sc_s}, -v{t}")
    for i in range(n):
        a(f"v_exp_f32 v{S+i}, v{S+i}")
    sk = a.new("norescale")
    a(f"s_cbranch_vccz {sk}")
    if dosum: a(f"v_mul_f32 v{V_L}, v{V_L}, v{t+1}")
    for i in range(no):
        a(f"v_mul_f32 v{OACC+i}, v{OACC+i}, v{t+1}")
    a.label(sk)
    for i in range(n if dosum else 0):
        a(f"v_add_f32 v{V_L}, v{V_L}, v{S+i}")
    for i in range(n // 2):
        a(f"v_cvt_pk_bf16_f32 v{P+i}, v{S+2*i}, v{S+2*i+1}")

def gen_attn_b(name):
    a = A()
    KRS = 272; VRS = 320
    KBY = 64 * KRS; VBY = 64 * VRS; BUF = KBY + VBY
    V_KG, V_VG, V_KW, V_VW, V_KR, V_VR, V_Q, V_M, V_L, V_T = 1, 2, 3, 4, 5, 6, 7, 8, 9, 10
    QF = 16; ST = 48; S = 80; P = 112; FB = 128; O = 160; NV = 224
    a.label(name)
    done = a.new("done")
    a("s_load_dwordx2 s[4:5], s[0:1], 104")
    a("s_cmp_ge_u32 s2, 512")
    a(f"s_cbranch_scc1 {done}")
    a("s_and_b32 s20, s2, 31")
    a("s_lshr_b32 s21, s2, 5")
    a("s_sub_u32 s19, 15, s21")
    a("s_sub_u32 s21, s21, 8")
    a("s_cmp_lt_u32 s2, 256")
    a("s_cselect_b32 s21, s19, s21")
    a("s_waitcnt lgkmcnt(0)")
    for d, off in ((8, QB_OFF), (12, KB_OFF), (16, VB_OFF), (24, CTX_OFF)):
        a(f"s_add_u32 s{d}, s4, {off}"); a(f"s_addc_u32 s{d+1}, s5, 0")
        a(f"s_mov_b32 s{d+2}, {16<<20}"); a(f"s_mov_b32 s{d+3}, 0x00020000")
    a("s_lshl_b32 s22, s20, 8")
    a("v_lshrrev_b32 v11, 6, v0"); a("s_nop 1"); a("v_readfirstlane_b32 s23, v11")
    a("v_and_b32 v11, 15, v0"); a("v_lshrrev_b32 v12, 4, v0")
    a(f"v_lshlrev_b32 v{V_KG}, 13, v12"); a(f"v_lshl_add_u32 v{V_KG}, v11, 4, v{V_KG}")
    a(f"v_add_u32 v{V_KG}, s22, v{V_KG}")
    a(f"s_movk_i32 s28, {KRS}"); a(f"v_mul_lo_u32 v{V_KW}, v12, s28"); a(f"v_lshl_add_u32 v{V_KW}, v11, 4, v{V_KW}")
    a(f"s_movk_i32 s28, {VRS}"); a(f"v_mul_lo_u32 v{V_VW}, v12, s28"); a(f"v_lshl_add_u32 v{V_VW}, v11, 4, v{V_VW}")
    a(f"v_add_u32 v{V_VW}, {KBY}, v{V_VW}")
    a("v_and_b32 v11, 31, v0"); a("v_bfe_u32 v12, v0, 5, 1")
    a(f"s_movk_i32 s28, {KRS}"); a(f"v_mul_lo_u32 v{V_KR}, v11, s28"); a(f"v_lshl_add_u32 v{V_KR}, v12, 4, v{V_KR}")
    a("v_bfe_u32 v13, v0, 2, 2"); a("v_lshl_add_u32 v13, v12, 2, v13")
    a(f"s_movk_i32 s28, {VRS}"); a(f"v_mul_lo_u32 v{V_VR}, v13, s28")
    a("v_bfe_u32 v13, v0, 4, 1"); a(f"v_lshl_add_u32 v{V_VR}, v13, 5, v{V_VR}")
    a("v_and_b32 v13, 3, v0"); a(f"v_lshl_add_u32 v{V_VR}, v13, 3, v{V_VR}")
    a(f"v_add_u32 v{V_VR}, {KBY}, v{V_VR}")
    a("s_lshl_b32 s29, s21, 7"); a("s_lshl_b32 s30, s23, 5"); a("s_add_u32 s29, s29, s30")
    a(f"v_add_u32 v{V_Q}, s29, v11")
    a(f"v_lshlrev_b32 v13, 13, v{V_Q}"); a("v_lshl_add_u32 v13, v12, 4, v13"); a("v_add_u32 v13, s22, v13")
    for ks in range(8):
        a(f"buffer_load_dwordx4 {vr(QF+4*ks,4)}, v13, s[8:11], 0 offen offset:{ks*32}")
    a(f"v_lshlrev_b32 v14, 2, v12"); a(f"v_sub_u32 v14, v{V_Q}, v14")
    a(f"v_mov_b32 v{V_M}, 0xf149f2ca"); a(f"v_mov_b32 v{V_L}, 0")
    for i in range(64): a(f"v_mov_b32 v{O+i}, 0")
    a(f"s_mov_b32 s31, {f2u(128**-0.5*math.log2(math.e))}")
    a("s_lshl_b32 s32, s21, 1"); a("s_add_u32 s32, s32, 2")
    a("s_mov_b32 s33, 0")
    a("s_mov_b32 s35, 0")
    a(f"s_mov_b32 s38, {BUF}")
    def gload():
        for i in range(4):
            a(f"s_add_u32 s36, s35, {i<<17}")
            a(f"buffer_load_dwordx4 {vr(ST+4*i,4)}, v{V_KG}, s[12:15], s36 offen")
            a(f"buffer_load_dwordx4 {vr(ST+16+4*i,4)}, v{V_KG}, s[16:19], s36 offen")
        a(f"s_add_u32 s35, s35, {64<<13}")
    def lwrite():
        a("s_waitcnt vmcnt(0)")
        for i in range(4):
            a(f"ds_write_b128 v{V_KW}, {vr(ST+4*i,4)} offset:{i*16*KRS}")
            a(f"ds_write_b128 v{V_VW}, {vr(ST+16+4*i,4)} offset:{i*16*VRS}")
    gload(); lwrite()
    a(f"v_add_u32 v{V_KW}, s38, v{V_KW}"); a(f"v_add_u32 v{V_VW}, s38, v{V_VW}")
    a("s_waitcnt lgkmcnt(0)"); a("s_barrier")
    loop = a.new("loop"); nold = a.new("nold"); nowr = a.new("nowr"); nomask = a.new("nomask")
    a.label(loop)
    a("s_add_u32 s34, s33, 1"); a("s_cmp_ge_u32 s34, s32"); a(f"s_cbranch_scc1 {nold}")
    gload()
    a.label(nold)
    for t in range(2):
        for ks in range(8):
            a(f"ds_read_b128 {vr(FB+4*ks,4)}, v{V_KR} offset:{t*32*KRS+ks*32}")
        for ks in range(8):
            a(f"s_waitcnt lgkmcnt({7-ks})")
            c = "0" if ks == 0 else vr(S+16*t,16)
            a(f"v_mfma_f32_32x32x16_bf16 {vr(S+16*t,16)}, {vr(FB+4*ks,4)}, {vr(QF+4*ks,4)}, {c}")
    a("s_nop 15")
    a("s_add_u32 s34, s33, 2"); a("s_cmp_lt_u32 s34, s32"); a(f"s_cbranch_scc1 {nomask}")
    a("s_lshl_b32 s34, s33, 6")
    for t in range(2):
        for r in range(16):
            a(f"s_add_u32 s36, s34, {t*32+8*(r//4)+r%4}")
            a(f"v_cmp_lt_i32 vcc, v14, s36")
            a("s_nop 1")
            a(f"v_cndmask_b32 v{S+16*t+r}, v{S+16*t+r}, v{V_L+6}, vcc")
    a.label(nomask)
    softmax_tile(a, S, 32, V_M, V_L, V_T, O, 64, P, 31)
    def vfr(j, st):
        for dt in range(4):
            for h in range(2):
                a(f"ds_read_b64_tr_b16 {vr(FB+16*st+4*dt+2*h,2)}, v{V_VR} offset:{(16*j+8*h)*VRS+dt*64}")
    vfr(0, 0)
    for j in range(4):
        if j < 3:
            vfr(j + 1, (j + 1) & 1); a("s_waitcnt lgkmcnt(8)")
        else:
            a("s_waitcnt lgkmcnt(0)")
        for dt in range(4):
            a(f"v_mfma_f32_32x32x16_bf16 {vr(O+16*dt,16)}, {vr(FB+16*(j&1)+4*dt,4)}, {vr(P+4*j,4)}, {vr(O+16*dt,16)}")
    a("s_add_u32 s34, s33, 1"); a("s_cmp_ge_u32 s34, s32"); a(f"s_cbranch_scc1 {nowr}")
    lwrite()
    a.label(nowr)
    a(f"v_add_u32 v{V_KR}, s38, v{V_KR}"); a(f"v_add_u32 v{V_VR}, s38, v{V_VR}")
    a("s_sub_u32 s38, 0, s38")
    a(f"v_add_u32 v{V_KW}, s38, v{V_KW}"); a(f"v_add_u32 v{V_VW}, s38, v{V_VW}")
    a("s_waitcnt lgkmcnt(0)"); a("s_barrier")
    a("s_add_u32 s33, s33, 1"); a("s_cmp_lt_u32 s33, s32"); a(f"s_cbranch_scc1 {loop}")
    a("s_nop 15")
    a(f"v_mov_b32 v{V_T}, v{V_L}"); a("s_nop 1"); a(f"v_permlane32_swap_b32 v{V_T}, v{V_L}")
    a(f"v_add_f32 v{V_L}, v{V_L}, v{V_T}"); a(f"v_rcp_f32 v{V_L}, v{V_L}")
    a(f"v_lshlrev_b32 v13, 13, v{V_Q}"); a("v_lshl_add_u32 v13, v12, 3, v13"); a("v_add_u32 v13, s22, v13")
    for i in range(64): a(f"v_mul_f32 v{O+i}, v{O+i}, v{V_L}")
    for dt in range(4):
        for g in range(4):
            r = O + 16 * dt + 4 * g; tmp = FB + 2 * (dt * 4 + g)
            a(f"v_cvt_pk_bf16_f32 v{tmp}, v{r}, v{r+1}"); a(f"v_cvt_pk_bf16_f32 v{tmp+1}, v{r+2}, v{r+3}")
            a(f"buffer_store_dwordx2 {vr(tmp,2)}, v13, s[24:27], 0 offen offset:{(dt*32+8*g)*2}")
    a.label(done); a("s_endpgm")
    txt = a.text().replace(f"v_mov_b32 v{V_L}, 0\n", f"v_mov_b32 v{V_L}, 0\n    v_mov_b32 v{V_L+6}, 0xf149f2ca\n", 1)
    return txt, dict(name=name, vgpr=NV, sgpr=48, lds=2*BUF, threads=256, grid=512)


def gen_attn_a(name):
    a = A()
    KBY = 512 * 32; VBY = 512 * 64
    V_KR, V_VR, V_Q, V_M, V_L, V_T = 1, 2, 3, 4, 5, 6
    QF = 16; S = 32; P = 64; FB = 80; O = 112; NV = 128
    a.label(name)
    done = a.new("done")
    a("s_load_dwordx2 s[4:5], s[0:1], 104")
    a("s_cmp_ge_u32 s2, 512"); a(f"s_cbranch_scc1 {done}")
    a("s_waitcnt lgkmcnt(0)")
    for d, off, n in ((8, QA_OFF, 2<<20), (12, KA_OFF, 65536), (16, VA_OFF, 65536), (24, OA_OFF, 2<<20)):
        a(f"s_add_u32 s{d}, s4, {off}"); a(f"s_addc_u32 s{d+1}, s5, 0")
        a(f"s_mov_b32 s{d+2}, {n}"); a(f"s_mov_b32 s{d+3}, 0x00020000")
    a("v_lshrrev_b32 v11, 6, v0"); a("s_nop 1"); a("v_readfirstlane_b32 s23, v11")
    a("s_lshl_b32 s20, s2, 2"); a("s_add_u32 s20, s20, s23")
    a("s_lshr_b32 s21, s20, 6"); a("s_and_b32 s22, s20, 63")
    a("v_and_b32 v11, 31, v0"); a("v_bfe_u32 v12, v0, 5, 1")
    a("s_lshl_b32 s22, s22, 5"); a(f"v_add_u32 v{V_Q}, s22, v11")
    a("s_lshl_b32 s21, s21, 5")
    a(f"v_lshlrev_b32 v13, 10, v{V_Q}"); a("v_lshl_add_u32 v13, v12, 4, v13"); a("v_add_u32 v13, s21, v13")
    a(f"buffer_load_dwordx4 {vr(QF,4)}, v13, s[8:11], 0 offen")
    a(f"v_lshlrev_b32 v{V_KR}, 5, v11"); a(f"v_lshl_add_u32 v{V_KR}, v12, 4, v{V_KR}")
    a("v_bfe_u32 v13, v0, 2, 2"); a("v_lshl_add_u32 v13, v12, 2, v13")
    a(f"v_lshlrev_b32 v{V_VR}, 6, v13")
    a("v_bfe_u32 v13, v0, 4, 1"); a(f"v_lshl_add_u32 v{V_VR}, v13, 5, v{V_VR}")
    a("v_and_b32 v13, 3, v0"); a(f"v_lshl_add_u32 v{V_VR}, v13, 3, v{V_VR}")
    a(f"v_add_u32 v{V_VR}, {KBY}, v{V_VR}")
    a(f"v_mov_b32 v{V_M}, 0xf149f2ca")
    for i in range(16): a(f"v_mov_b32 v{O+i}, 0")
    a(f"s_mov_b32 s31, {f2u(0.25*math.log2(math.e))}")
    a("v_mov_b32 v20, 0x3f80"); a("v_mov_b32 v21, 0"); a("v_mov_b32 v22, 0"); a("v_mov_b32 v23, 0")
    for ph in range(4):
        a("s_barrier")
        a("v_lshlrev_b32 v13, 4, v0")
        for i in range(4):
            a(f"buffer_load_dwordx4 {vr(FB+4*i,4)}, v13, s[12:15], 0 offen offset:0" .replace("0 offen", f"s40 offen") if False else f"s_mov_b32 s40, {ph*16384+i*4096}")
            a(f"buffer_load_dwordx4 {vr(FB+4*i,4)}, v13, s[12:15], s40 offen")
            a(f"buffer_load_dwordx4 {vr(FB+16+4*i,4)}, v13, s[16:19], s40 offen")
        a("v_lshrrev_b32 v14, 1, v0"); a("v_lshlrev_b32 v14, 6, v14"); a("v_and_b32 v15, 1, v0")
        a("v_lshl_add_u32 v14, v15, 4, v14"); a(f"v_add_u32 v14, {KBY}, v14")
        a("s_waitcnt vmcnt(0)")
        for i in range(4):
            a(f"ds_write_b128 v13, {vr(FB+4*i,4)} offset:{i*4096}")
            a(f"ds_write_b128 v14, {vr(FB+16+4*i,4)} offset:{i*8192}")
        a("v_cmp_eq_u32 vcc, 0, v15"); a("s_nop 1"); a("v_cndmask_b32 v20, 0, v24, vcc".replace("v24", "v9"))
        for i in range(4):
            a(f"ds_write_b128 v14, v[20:23] offset:{i*8192+32}")
        a("s_waitcnt lgkmcnt(0)"); a("s_barrier")
        loop = a.new("loop")
        a("s_mov_b32 s33, 0")
        a.label(loop)
        a(f"v_add_u32 v13, s33, v{V_KR}")
        a("s_lshl_b32 s34, s33, 1"); a(f"v_add_u32 v14, s34, v{V_VR}")
        for t in range(2):
            a(f"ds_read_b128 {vr(FB+4*t,4)}, v13 offset:{t*1024}")
        for j in range(4):
            for h in range(2):
                a(f"ds_read_b64_tr_b16 {vr(FB+8+4*j+2*h,2)}, v14 offset:{(16*j+8*h)*64}")
        for t in range(2):
            a(f"s_waitcnt lgkmcnt({9-t})")
            a(f"v_mfma_f32_32x32x16_bf16 {vr(S+16*t,16)}, {vr(FB+4*t,4)}, {vr(QF,4)}, 0")
        a("s_nop 15")
        softmax_tile(a, S, 32, V_M, V_L, V_T, O, 16, P, 31, dosum=False)
        a("s_waitcnt lgkmcnt(0)")
        for j in range(4):
            a(f"v_mfma_f32_32x32x16_bf16 {vr(O,16)}, {vr(FB+8+4*j,4)}, {vr(P+4*j,4)}, {vr(O,16)}")
        a("s_add_u32 s33, s33, 2048"); a(f"s_cmp_lt_u32 s33, {KBY}"); a(f"s_cbranch_scc1 {loop}")
    a("s_nop 15")
    a(f"v_mov_b32 v{V_T}, v{O+8}"); a(f"v_mov_b32 v{V_L}, v{O+8}"); a("s_nop 1")
    a(f"v_permlane32_swap_b32 v{V_T}, v{V_L}")
    a(f"v_rcp_f32 v{V_T}, v{V_T}")
    a(f"v_lshlrev_b32 v13, 10, v{V_Q}"); a("v_lshl_add_u32 v13, v12, 3, v13"); a("v_add_u32 v13, s21, v13")
    for i in range(8): a(f"v_mul_f32 v{O+i}, v{O+i}, v{V_T}")
    for g in range(2):
        r = O + 4 * g; tmp = FB + 2 * g
        a(f"v_cvt_pk_bf16_f32 v{tmp}, v{r}, v{r+1}"); a(f"v_cvt_pk_bf16_f32 v{tmp+1}, v{r+2}, v{r+3}")
        a(f"buffer_store_dwordx2 {vr(tmp,2)}, v13, s[24:27], 0 offen offset:{g*16}")
    a.label(done); a("s_endpgm")
    txt = a.text().replace("v_mov_b32 v20, 0x3f80", "v_mov_b32 v9, 0x3f80")
    return txt, dict(name=name, vgpr=NV, sgpr=48, lds=KBY+VBY, threads=256, grid=512)
```
